```python
import torch

def _softmax(x, axis=-1):
    return torch.softmax(x, dim=axis)
def _gelu(x):
    return torch.nn.functional.gelu(x, approximate="tanh")
def _silu(x):
    return torch.nn.functional.silu(x)
def _sigmoid(x):
    return torch.sigmoid(x)
def _layernorm(x, axis=-1, eps=1e-5):
    m = x.mean(dim=axis, keepdim=True)
    v = x.var(dim=axis, keepdim=True, unbiased=False)
    return (x - m) / torch.sqrt(v + eps)
def _scatter_add(tgt, idx, src, axis=0):
    return tgt.clone().index_add_(axis, idx, src)
def _segment_sum(src, seg, n):
    out = torch.zeros((n,) + src.shape[1:], dtype=src.dtype)
    return out.index_add_(0, seg, src)
def _pad(x, pw):
    flat = tuple(v for pair in reversed(pw) for v in pair)
    return torch.nn.functional.pad(x, flat)

kernel_name = 'standalone__mixer_s_mlp__sampling'

def setup_inputs():

    _w = (lambda a: (lambda t: t.to(torch.bfloat16) if t.is_floating_point() else t)(torch.as_tensor(a)))
    B, S, D, F = 16, 32, 576, 4608
    return {
        "x":  _w((lambda *s: torch.randn(*s, dtype=torch.bfloat16) * 0.4)(B, S, D)),
        "w1": _w((lambda *s: torch.randn(*s, dtype=torch.bfloat16) * 3.2)(D, D) * (D ** -0.5)),
        "w2": _w((lambda *s: torch.randn(*s, dtype=torch.bfloat16) * 3.2)(D, D) * (D ** -0.5)),
        "w3": _w((lambda *s: torch.randn(*s, dtype=torch.bfloat16) * 3.2)(D, F) * (D ** -0.5)),
        "w4": _w((lambda *s: torch.randn(*s, dtype=torch.bfloat16) * 0.8)(F, D) * (F ** -0.5)),
    }

def reference(x, w1, w2, w3, w4):
    B, S, D = x.shape
    h = _gelu(_layernorm(x, axis=-1) @ w1)
    c = D // 4
    g0 = _pad(h[:, :, 0*c:1*c], ((0, 0), (1, 0), (0, 0)))[:, :S, :]
    g1 = _pad(h[:, :, 1*c:2*c], ((0, 0), (0, 1), (0, 0)))[:, 1:, :]
    g2 = _pad(h[:, :, 2*c:3*c], ((0, 0), (2, 0), (0, 0)))[:, :S, :]
    g3 = _pad(h[:, :, 3*c:   ], ((0, 0), (0, 2), (0, 0)))[:, 2:, :]
    hs = torch.concatenate([g0, g1, g2, g3], axis=-1) @ w2
    x1 = x + hs
    h2 = _gelu(_layernorm(x1, axis=-1) @ w3) @ w4
    return x1 + h2
```

```python
import re

TRANS = ("v_exp_f32", "v_log_f32", "v_rcp_f32", "v_rsq_f32", "v_sqrt_f32", "v_sin_f32", "v_cos_f32")
REG_RE = re.compile(r"^-?\|?(?:abs\()?([vas])(?:(\d+)|\[(\d+):(\d+)\])\)?\|?$")


def regs_of(tok):
    tok = tok.strip()
    if tok in ("vcc", "exec"):
        return [(tok, 0), (tok, 1)]
    if tok in ("vcc_lo", "exec_lo"):
        return [(tok[:-3], 0)]
    if tok in ("vcc_hi", "exec_hi"):
        return [(tok[:-3], 1)]
    if tok == "m0":
        return [("m0", 0)]
    m = REG_RE.match(tok)
    if not m:
        return []
    c = m.group(1)
    if m.group(2) is not None:
        return [(c, int(m.group(2)))]
    return [(c, i) for i in range(int(m.group(3)), int(m.group(4)) + 1)]


class Ins:
    def __init__(self, text):
        self.text = text
        t = text.split(";")[0].strip()
        self.is_label = t.endswith(":")
        self.is_dir = t.startswith(".")
        self.op = ""
        self.w = []
        self.r = []
        self.srcc = []
        self.sdata = []
        if not t or self.is_label or self.is_dir:
            return
        parts = t.split(None, 1)
        self.op = parts[0]
        ops = []
        if len(parts) > 1:
            depth = 0
            cur = ""
            for ch in parts[1]:
                if ch in "[(":
                    depth += 1
                if ch in "])":
                    depth -= 1
                if ch == "," and depth == 0:
                    ops.append(cur.strip())
                    cur = ""
                else:
                    cur += ch
            ops.append(cur.strip())
        if ops:
            last = ops[-1].split()
            self.mods = last[1:]
            ops[-1] = last[0] if last else ""
        else:
            self.mods = []
        self.ops = ops
        op = self.op
        R = [regs_of(o) for o in ops]
        flat = lambda xs: [x for l in xs for x in l]
        if op.startswith("v_mfma"):
            self.w = R[0]
            self.r = flat(R[1:])
            self.srcc = R[3]
            self.ab = R[1] + R[2]
        elif op.startswith("v_cmp"):
            self.w = R[0]
            self.r = flat(R[1:])
        elif op.startswith("v_permlane") and "swap" in op:
            self.w = R[0] + R[1]
            self.r = R[0] + R[1]
        elif op.startswith(("v_add_co", "v_sub_co", "v_addc_co")):
            self.w = R[0] + R[1]
            self.r = flat(R[2:])
        elif op.startswith("v_"):
            self.w = R[0]
            self.r = flat(R[1:])
            if op.startswith(("v_fmac", "v_dot2c", "v_pk_fmac")) or "dpp" in op:
                self.r += R[0]
            if op.startswith("v_cndmask") and len(ops) == 3:
                self.r += [("vcc", 0), ("vcc", 1)]
        elif op.startswith("buffer_store") or op.startswith("buffer_atomic"):
            self.r = flat(R)
            self.sdata = R[0] if ("x3" in op or "x4" in op) else []
        elif op.startswith("global_store"):
            self.r = flat(R)
            self.sdata = R[1] if ("x3" in op or "x4" in op) else []
        elif op.startswith("buffer_load"):
            if "lds" in self.mods:
                self.r = flat(R) + [("m0", 0)]
            else:
                self.w = R[0]
                self.r = flat(R[1:])
        elif op.startswith("global_load_lds"):
            self.r = flat(R) + [("m0", 0)]
        elif op.startswith("global_load"):
            self.w = R[0]
            self.r = flat(R[1:])
        elif op.startswith(("ds_write", "ds_add")):
            self.r = flat(R)
        elif op.startswith("ds_"):
            self.w = R[0]
            self.r = flat(R[1:])
        elif op.startswith(("s_cmp", "s_cbranch", "s_branch", "s_waitcnt", "s_nop", "s_barrier", "s_endpgm",
                            "s_sleep", "s_setprio", "s_bitcmp")):
            self.r = flat(R)
        elif op.startswith("s_"):
            self.w = R[0] if R else []
            self.r = flat(R[1:])
            if "saveexec" in op:
                self.w = self.w + [("exec", 0), ("exec", 1)]

    @property
    def valu(self):
        return self.op.startswith("v_") and not self.op.startswith("v_mfma")

    @property
    def mfma(self):
        return self.op.startswith("v_mfma")

    @property
    def vmem(self):
        return self.op.startswith(("buffer_", "global_"))

    @property
    def ds(self):
        return self.op.startswith("ds_")

    @property
    def states(self):
        if self.op == "s_nop":
            return int(self.ops[0], 0) + 1
        return 1 if self.op else 0


def need(p, c):
    n = 0
    pw, cr, cw = set(p.w), set(c.r), set(c.w)
    if p.mfma:
        passes = 8 if "32x32x16" in p.op else 4
        big = {4: 8, 8: 12}[passes]
        if c.mfma:
            if pw & set(c.ab):
                n = max(n, big)
            ov = pw & set(c.srcc)
            if ov and (p.w != c.srcc or p.op != c.op):
                n = max(n, {4: 6, 8: 10}[passes])
            elif pw & cw and p.w != c.srcc:
                n = max(n, big)
        elif (c.valu or c.vmem or c.ds) and pw & (cr | cw):
            n = max(n, big)
        if c.valu and set(p.srcc) & cw:
            n = max(n, {4: 3, 8: 7}[passes])
    if p.valu:
        vw = {x for x in pw if x[0] in "va" and len(x[0]) == 1}
        sw = pw - vw
        if c.mfma and vw & cr:
            n = max(n, 2)
        if c.valu and "dpp" in c.op and vw & cr:
            n = max(n, 2)
        if c.op.startswith("v_permlane") and vw & cr:
            n = max(n, 2)
        if c.op.startswith(("v_readlane", "v_readfirstlane")) and vw & cr:
            n = max(n, 1)
        if p.op.startswith(TRANS) and c.valu and not c.op.startswith(TRANS) and vw & cr:
            n = max(n, 1)
        if p.op.startswith(TRANS) and (c.vmem or c.ds) and vw & cr:
            n = max(n, 1)
        if "sdwa" in p.op and c.valu and vw & (cr | cw):
            n = max(n, 1)
        if p.op.startswith("v_dot"):
            if vw & (cr | cw) and (c.op != p.op):
                n = max(n, 3)
        if sw & cr:
            if c.vmem:
                n = max(n, 5)
            elif c.op.startswith(("v_readlane", "v_writelane")):
                n = max(n, 4)
            elif c.valu:
                n = max(n, 2)
            elif c.op.startswith("s_"):
                n = max(n, 2)
        if sw and c.op.startswith(("s_cbranch_vcc", "s_cbranch_exec")) and any(x[0] in ("vcc", "exec") for x in sw):
            n = max(n, 5)
    if p.op.startswith("s_") and ("m0", 0) in pw and ("m0", 0) in cr and c.vmem:
        n = max(n, 1)
    if p.sdata and set(p.sdata) & cw:
        n = max(n, 2)
    return n


def fix_hazards(lines):
    out = []
    hist = []
    for text in lines:
        c = Ins(text)
        if c.op:
            dist = 0
            pad = 0
            for p in reversed(hist):
                k = need(p, c)
                if k > dist:
                    pad = max(pad, k - dist)
                dist += p.states
                if dist >= 20:
                    break
            while pad > 0:
                k = min(pad, 16)
                nop = Ins("s_nop %d" % (k - 1))
                out.append("    s_nop %d" % (k - 1))
                hist.append(nop)
                pad -= k
            hist.append(c)
            if len(hist) > 40:
                hist = hist[-24:]
        out.append(text)
    return out


class Asm:
    def __init__(self):
        self.lines = []
        self.vm = []
        self.lg = []
        self.nlab = 0

    def __call__(self, s):
        for l in s.split("\n"):
            l = l.strip()
            if l:
                self.lines.append(("" if l.endswith(":") else "    ") + l)

    def label(self, p="L"):
        self.nlab += 1
        return "%s_%d" % (p, self.nlab)

    def vmem(self, s, tag):
        self(s)
        self.vm.append(tag)

    def lds(self, s, tag):
        self(s)
        self.lg.append(tag)

    def _n(self, lst, tags):
        if isinstance(tags, (str, tuple)):
            tags = [tags]
        idx = -1
        for i, t in enumerate(lst):
            if t in tags:
                idx = i
        return idx

    def wait_vm(self, tags=None):
        if tags is None:
            self("s_waitcnt vmcnt(0)")
            self.vm = []
            return
        i = self._n(self.vm, tags)
        if i < 0:
            return
        n = len(self.vm) - 1 - i
        if n > 63:
            n = 63
            i = len(self.vm) - 1 - n
        self("s_waitcnt vmcnt(%d)" % n)
        self.vm = self.vm[i + 1:]

    def wait_lg(self, tags=None):
        if tags is None:
            self("s_waitcnt lgkmcnt(0)")
            self.lg = []
            return
        i = self._n(self.lg, tags)
        if i < 0:
            return
        n = len(self.lg) - 1 - i
        if n > 15:
            n = 15
            i = len(self.lg) - 1 - n
        self("s_waitcnt lgkmcnt(%d)" % n)
        self.lg = self.lg[i + 1:]

    def text(self):
        return "\n".join(fix_hazards(self.lines)) + "\n"
```

```python
import sys
from asmlib import Asm

NAME = "standalone__mixer_s_mlp__sampling"
HEADER = open("cdna_kernels/%s.s.ref" % NAME).read().split("; Override")[0]

FL = 0
FL_F2, FL_F4, FL_G1, FL_G3 = 128, 128 * 19, 128 * 51, 128 * 69
HS = 0x40000
X1 = 0x100000
H2A = 0x200000
PART = 0x800000
STAMP = 0x2000000
LA, LB, LST = 0, 73728, 147456
LDS_BYTES = 163840

SRD = dict(x=8, w1=12, w2=16, w3=20, w4=24, out=28, dbg=32, ws=36)
SIZES = dict(x=589824, w1=663552, w2=663552, w3=5308416, w4=5308416, out=589824, dbg=256, ws=268435456)
srd = lambda n: "s[%d:%d]" % (SRD[n], SRD[n] + 3)
sK, sJ, sM, sQ, sW, sBL, sCB, sXCC, sNM, sNK = ["s%d" % i for i in range(40, 50)]
sT0, sT1, sT2, sT3, sOFF, sCNT, sM0, sWG = ["s%d" % i for i in range(50, 58)]
sSTAMP = "s[60:61]"
K0 = 2.0 * 0.7978845608028654 * 1.4426950408889634
K1 = K0 * 0.044715


def f2h(x):
    import struct
    return "0x%08x" % struct.unpack("<I", struct.pack("<f", x))[0]


class G:
    def __init__(self, stamps=False, teamshift=False):
        self.a = Asm()
        self.stamps = stamps
        self.teamshift = teamshift
        self.nv = 0
        self.nstamp = 0

    def v(self, n=1, align=1):
        self.nv = (self.nv + align - 1) // align * align
        r = self.nv
        self.nv += n
        assert self.nv <= 256, self.nv
        return r

    def stamp(self):
        if not self.stamps:
            return
        a = self.a
        i = self.nstamp
        self.nstamp += 1
        a("s_memrealtime %s" % sSTAMP)
        a("s_waitcnt lgkmcnt(0)")
        a.lg = []
        a("v_writelane_b32 v%d, s60, %d" % (self.vSTAMP, i))


def vr(b, n):
    return "v[%d:%d]" % (b, b + n - 1) if n > 1 else "v%d" % b


def ar(b, n):
    return "a[%d:%d]" % (b, b + n - 1) if n > 1 else "a%d" % b


def gelu(g, y, t):
    a = g.a
    for r, u in zip(y, t):
        a("v_mul_f32 v%d, v%d, v%d" % (u, r, r))
    for r, u in zip(y, t):
        a("v_fmaak_f32 v%d, v%d, v%d, %s" % (u, g.vK1, u, f2h(-K0)))
    for r, u in zip(y, t):
        a("v_mul_f32 v%d, v%d, v%d" % (u, u, r))
    for r, u in zip(y, t):
        a("v_exp_f32 v%d, v%d" % (u, u))
    for r, u in zip(y, t):
        a("v_add_f32 v%d, 1.0, v%d" % (u, u))
    for r, u in zip(y, t):
        a("v_rcp_f32 v%d, v%d" % (u, u))
    for r, u in zip(y, t):
        a("v_mul_f32 v%d, v%d, v%d" % (r, r, u))


def ln_scalars(g, s, q, t):
    a = g.a
    a("v_mul_f32 v%d, %s, v%d" % (s, f2h(1.0 / 576), s))
    a("v_mul_f32 v%d, %s, v%d" % (q, f2h(1.0 / 576), q))
    a("v_fma_f32 v%d, -v%d, v%d, v%d" % (q, s, s, q))
    a("v_max_f32 v%d, 0, v%d" % (q, q))
    a("v_cvt_pk_bf16_f32 v%d, v%d, v%d" % (t, s, q))
    a("v_lshlrev_b32 v%d, 16, v%d" % (s, t))
    a("v_and_b32 v%d, 0xffff0000, v%d" % (q, t))
    a("v_add_f32 v%d, %s, v%d" % (q, f2h(1e-5), q))
    a("v_cvt_pk_bf16_f32 v%d, v%d, v%d" % (t, q, q))
    a("v_lshlrev_b32 v%d, 16, v%d" % (q, t))
    a("v_sqrt_f32 v%d, v%d" % (q, q))
    a("v_cvt_pk_bf16_f32 v%d, v%d, v%d" % (t, q, q))
    a("v_lshlrev_b32 v%d, 16, v%d" % (q, t))
    a("v_rcp_f32 v%d, v%d" % (t, q))
    a("v_mul_f32 v%d, -v%d, v%d" % (q, s, t))
    a("v_mov_b32 v%d, v%d" % (s, t))


def signal_local(g, val):
    a = g.a
    a.wait_vm()
    a("s_barrier")
    L = a.label("sig")
    a("s_cmp_lg_u32 %s, 0" % sW)
    a("s_cbranch_scc1 %s" % L)
    a("s_or_b32 %s, %s, %d" % (sT0, sXCC, val))
    a("v_mov_b32 v%d, %s" % (g.vT[0], sT0))
    a("v_mov_b32 v%d, %s" % (g.vT[1], sWG))
    a("s_mov_b64 exec, 1")
    a("buffer_store_byte v%d, v%d, %s, 0 offen" % (g.vT[0], g.vT[1], srd("dbg")))
    a("s_mov_b64 exec, -1")
    a(L + ":")


def wait_local(g, val, n, first_s, goff_s, me_s, nonce):
    a = g.a
    Ld, L1, L2, Ls = a.label("wl_done"), a.label("wl_fast"), a.label("wl_slow"), a.label("wl_pub")
    t0, t1, t2, t3 = g.vT[:4]
    a("s_cmp_lg_u32 %s, 0" % sW)
    a("s_cbranch_scc1 %s" % Ld)
    a("v_min_u32 v%d, %d, v%d" % (t0, n - 1, g.vLANE))
    a("v_lshl_add_u32 v%d, v%d, 7, %s" % (t1, t0, goff_s))
    a("v_lshl_add_u32 v%d, v%d, 3, %s" % (t0, t0, first_s))
    a("s_or_b32 %s, %s, %d" % (sT0, sXCC, val))
    a("s_mov_b32 %s, 0" % sCNT)
    a(L1 + ":")
    a("buffer_load_ubyte v%d, v%d, %s, 0 offen sc1" % (t2, t0, srd("dbg")))
    a("s_waitcnt vmcnt(0)")
    a("v_and_b32 v%d, %d, v%d" % (t3, val | 7, t2))
    a("v_cmp_ne_u32 vcc, %s, v%d" % (sT0, t3))
    a("s_cbranch_vccz %s" % Ld)
    a("s_add_u32 %s, %s, 1" % (sCNT, sCNT))
    a("s_cmp_lt_u32 %s, 64" % sCNT)
    a("s_cbranch_scc1 %s" % L1)
    a("buffer_wbl2 sc1")
    a("s_waitcnt vmcnt(0)")
    a("s_lshl_b32 %s, %s, 7" % (sT1, me_s))
    a("s_add_u32 %s, %s, %s" % (sT1, sT1, goff_s))
    a("v_mov_b32 v%d, %s" % (t2, sT1))
    a("v_mov_b32 v%d, %s" % (t3, nonce))
    a("s_mov_b64 exec, 1")
    a("buffer_store_dword v%d, v%d, %s, 0 offen sc1" % (t3, t2, srd("ws")))
    a("s_mov_b64 exec, -1")
    a(L2 + ":")
    a("buffer_load_ubyte v%d, v%d, %s, 0 offen sc1" % (t2, t0, srd("dbg")))
    a("buffer_load_dword v%d, v%d, %s, 0 offen sc1" % (t3, t1, srd("ws")))
    a("s_waitcnt vmcnt(0)")
    a("v_and_b32 v%d, %d, v%d" % (t2, val | 7, t2))
    a("v_cmp_ne_u32 vcc, %s, v%d" % (sT0, t2))
    a("v_cmp_ne_u32 s[62:63], %s, v%d" % (nonce, t3))
    a("s_and_b64 vcc, vcc, s[62:63]")
    a("s_cbranch_vccz %s" % Ls)
    a("s_add_u32 %s, %s, 1" % (sCNT, sCNT))
    a("s_cmp_lt_u32 %s, 0x20000" % sCNT)
    a("s_cbranch_scc1 %s" % L2)
    a(Ls + ":")
    a("buffer_inv sc1")
    a("s_waitcnt vmcnt(0)")
    a(Ld + ":")
    a("s_barrier")


def signal_dev(g, off_s, nonce):
    a = g.a
    a.wait_vm()
    a("s_barrier")
    L = a.label("sig")
    a("s_cmp_lg_u32 %s, 0" % sW)
    a("s_cbranch_scc1 %s" % L)
    a("v_mov_b32 v%d, %s" % (g.vT[0], nonce))
    a("v_mov_b32 v%d, %s" % (g.vT[1], off_s))
    a("s_mov_b64 exec, 1")
    a("buffer_store_dword v%d, v%d, %s, 0 offen sc1" % (g.vT[0], g.vT[1], srd("ws")))
    a("s_mov_b64 exec, -1")
    a(L + ":")


def wait_dev(g, n, off_s, shift, nonce):
    a = g.a
    Ld, L1 = a.label("wd_done"), a.label("wd_loop")
    t0, t1 = g.vT[:2]
    a("s_cmp_lg_u32 %s, 0" % sW)
    a("s_cbranch_scc1 %s" % Ld)
    a("v_min_u32 v%d, %d, v%d" % (t0, n - 1, g.vLANE))
    a("v_lshl_add_u32 v%d, v%d, %d, %s" % (t0, t0, shift, off_s))
    a("s_mov_b32 %s, 0" % sCNT)
    a(L1 + ":")
    a("buffer_load_dword v%d, v%d, %s, 0 offen sc1" % (t1, t0, srd("ws")))
    a("s_waitcnt vmcnt(0)")
    a("v_cmp_ne_u32 vcc, %s, v%d" % (nonce, t1))
    a("s_cbranch_vccz %s" % Ld)
    a("s_add_u32 %s, %s, 1" % (sCNT, sCNT))
    a("s_cmp_lt_u32 %s, 0x20000" % sCNT)
    a("s_cbranch_scc1 %s" % L1)
    a(Ld + ":")
    a("s_barrier")


def dma_linear(g, lds_base, glob_s, per_wave, flags=""):
    a = g.a
    a("s_lshl_b32 %s, %s, 10" % (sT0, sW))
    a("s_add_u32 %s, %s, %d" % (sM0, sT0, lds_base))
    a("s_add_u32 %s, %s, %s" % (sOFF, sT0, glob_s))
    for i in range(per_wave):
        a("s_mov_b32 m0, %s" % sM0)
        a.vmem("buffer_load_dwordx4 v%d, %s, %s offen %s lds" % (g.vL16, srd("ws"), sOFF, flags), "lin")
        if i + 1 < per_wave:
            a("s_add_u32 %s, %s, 4096" % (sM0, sM0))
            a("s_add_u32 %s, %s, 4096" % (sOFF, sOFF))


def dma_w12(g, name):
    a = g.a
    a("s_lshl_b32 %s, %s, 10" % (sM0, sW))
    a("s_add_u32 %s, %s, %d" % (sM0, sM0, LB))
    a("s_mov_b32 %s, 0" % sOFF)
    for t in range(18):
        a("s_mov_b32 m0, %s" % sM0)
        a.vmem("buffer_load_dwordx4 v%d, %s, %s offen lds" % (g.vW12, srd(name), sOFF), (name, t))
        if t < 17:
            a("s_add_u32 %s, %s, 4096" % (sM0, sM0))
            a("s_add_u32 %s, %s, 36864" % (sOFF, sOFF))


def tr_w12(g, dst):
    a = g.a
    for t in range(18):
        base, off = (g.vTR12, t * 4096) if t < 9 else (g.vTR12 + 1, (t - 9) * 4096)
        a.lds("ds_read_b64_tr_b16 %s, v%d offset:%d" % (ar(dst + 4 * t, 2), base, off), ("tr12", t))
        a.lds("ds_read_b64_tr_b16 %s, v%d offset:%d" % (ar(dst + 4 * t + 2, 2), base, off + 512), ("tr12", t))


def addr_wbig(g, stride, colbase_s):
    a = g.a
    t0, t1, t2, t3 = g.vT[:4]
    a("s_and_b32 %s, %s, 1" % (sT0, sW))
    a("s_lshl_b32 %s, %s, 2" % (sT0, sT0))
    a("s_lshr_b32 %s, %s, 1" % (sT1, sW))
    a("s_lshl_b32 %s, %s, 5" % (sT1, sT1))
    a("s_add_u32 %s, %s, %s" % (sT0, sT0, sT1))
    a("s_mul_i32 %s, %s, %d" % (sT0, sT0, stride))
    a("s_add_u32 %s, %s, %s" % (sT0, sT0, colbase_s))
    a("s_mov_b32 %s, %d" % (sT1, stride))
    for i in range(5):
        u0 = 0 if i == 0 else 32 + 64 * (i - 1)
        d = g.vWB + i
        a("v_add_u32 v%d, %d, v%d" % (t0, u0, g.vLANE))
        a("v_mul_u32_u24 v%d, 3641, v%d" % (t1, t0))
        a("v_lshrrev_b32 v%d, 16, v%d" % (t1, t1))
        a("v_mul_u32_u24 v%d, 18, v%d" % (t2, t1))
        a("v_sub_u32 v%d, v%d, v%d" % (t0, t0, t2))
        a("v_lshrrev_b32 v%d, 2, v%d" % (t2, t1))
        a("v_and_b32 v%d, 3, v%d" % (t1, t1))
        a("v_lshl_add_u32 v%d, v%d, 3, v%d" % (t1, t2, t1))
        a("v_mul_lo_u32 v%d, v%d, %s" % (t1, t1, sT1))
        a("v_lshl_add_u32 v%d, v%d, 4, v%d" % (t1, t0, t1))
        a("v_add_u32 v%d, %s, v%d" % (d, sT0, t1))
        if i:
            a("v_subrev_u32 v%d, %d, v%d" % (d, u0 * 16, d))


def dma_stage(g, name, s, stride, slot):
    a = g.a
    a("s_mul_i32 %s, %s, 4608" % (sM0, sW))
    a("s_add_u32 %s, %s, %d" % (sM0, sM0, LB + slot * 18432))
    a("s_mov_b32 m0, %s" % sM0)
    a("s_mov_b32 %s, %d" % (sOFF, s * 64 * stride))
    a("s_mov_b32 exec_hi, 0")
    a.vmem("buffer_load_dwordx4 v%d, %s, %s offen lds" % (g.vWB, srd(name), sOFF), (name, s))
    a("s_mov_b32 exec_hi, -1")
    for i in range(1, 5):
        a.vmem("buffer_load_dwordx4 v%d, %s, %s offen offset:%d lds" % (g.vWB + i, srd(name), sOFF, 512 + 1024 * (i - 1)),
               (name, s))


def tr_stage(g, s, slot, dst):
    a = g.a
    hi = slot >> 1
    for kk in range(2):
        t = 2 * s + kk
        off = (slot & 1) * 18432 + kk * 9216
        for c in range(3):
            base = g.vTRB + hi if c < 2 else g.vTRB + 2 + hi
            o = off + (32 if c == 1 else 0)
            r = dst + 12 * t + 4 * c
            a.lds("ds_read_b64_tr_b16 %s, v%d offset:%d" % (ar(r, 2), base, o), ("trb", s))
            a.lds("ds_read_b64_tr_b16 %s, v%d offset:%d" % (ar(r + 2, 2), base, o + 4608), ("trb", s))


def stream_big(g, name, stride, dst):
    a = g.a
    for s in range(4):
        dma_stage(g, name, s, stride, s)
    for s in range(9):
        a.wait_vm((name, s))
        a("s_barrier")
        tr_stage(g, s, s & 3, dst)
        a.wait_lg()
        if s + 4 < 9:
            a("s_barrier")
            dma_stage(g, name, s + 4, stride, s & 3)
    a("s_barrier")


def gemm_big(g, wdst, acc, stats):
    a = g.a
    xf = g.vXF
    for i in range(4):
        a("v_mov_b32 v%d, v%d" % (g.vXA + i, g.vXA0 + i))

    def rd(t):
        if t == 16:
            for i in range(4):
                a("v_add_u32 v%d, 0x10000, v%d" % (g.vXA + i, g.vXA + i))
        for i in range(4):
            a.lds("ds_read_b128 %s, v%d offset:%d" % (vr(xf + 16 * (t & 1) + 4 * i, 4), g.vXA + i, (t & 15) * 4096),
                  ("xf", t))
    rd(0)
    for t in range(18):
        if t + 1 < 18:
            rd(t + 1)
        a.wait_lg(("xf", t))
        x = xf + 16 * (t & 1)
        w = wdst + 12 * t
        for c in range(2):
            for i in range(4):
                d = vr(acc + 16 * c + 4 * i, 4)
                a("v_mfma_f32_16x16x32_bf16 %s, %s, %s, %s" % (d, ar(w + 4 * c, 4), vr(x + 4 * i, 4), d if t else "0"))
        d = vr(acc + 32, 4)
        a("v_mfma_f32_16x16x32_bf16 %s, %s, %s, %s" % (d, ar(w + 8, 4), vr(x, 4), d if t else "0"))
        if stats:
            d = vr(stats[0], 4)
            a("v_mfma_f32_16x16x32_bf16 %s, %s, %s, %s" % (d, vr(g.vONES, 4), vr(x, 4), d if t else "0"))
            d = vr(stats[1], 4)
            a("v_mfma_f32_16x16x32_bf16 %s, %s, %s, %s" % (d, vr(x, 4), vr(x, 4), d if t else "0"))


def build(stamps=False, teamshift=False):
    g = G(stamps, teamshift)
    a = g.a
    g.nv = 1
    g.vLANE = g.v()
    g.vL16 = g.v()
    g.vK1 = g.v()
    g.vSTAMP = g.v()
    g.vT = [g.v() for _ in range(12)]
    g.vW12 = g.v()
    g.vTR12 = g.v(2)
    g.vXD = g.v()
    g.vXR = g.v(2)
    g.vWB = g.v(5)
    g.vTRB = g.v(4)
    g.vXA0 = g.v(4)
    g.vXA = g.v(4)
    g.vRES = g.v(4, 2)
    g.vONES = g.v(4, 4)
    g.vXF = g.v(36, 4)
    g.vACC = g.v(36, 4)
    g.vCS = g.v(12, 4)
    g.vSS = g.v(8, 4)
    g.vTMP = g.v(36, 4)
    g.vAB = g.v(8, 2)
    T = g.vT
    Lend = "L_end"

    a("s_cmp_ge_u32 s2, 256")
    a("s_cbranch_scc1 %s" % Lend)
    for i, n in enumerate(["x", "w1", "w2", "w3", "w4", "out", "dbg", "ws"]):
        a("s_load_dwordx2 s[%d:%d], s[0:1], %d" % (SRD[n], SRD[n] + 1, 8 * i))
    for n in SRD:
        a("s_mov_b32 s%d, %d" % (SRD[n] + 2, SIZES[n]))
        a("s_mov_b32 s%d, 0x20000" % (SRD[n] + 3))
    if teamshift:
        a("s_lshr_b32 %s, s2, 5" % sK)
        a("s_and_b32 %s, s2, 31" % sJ)
    else:
        a("s_and_b32 %s, s2, 7" % sK)
        a("s_lshr_b32 %s, s2, 3" % sJ)
    a("s_lshl_b32 %s, %s, 3" % (sWG, sJ))
    a("s_add_u32 %s, %s, %s" % (sWG, sWG, sK))
    a("s_lshr_b32 %s, %s, 2" % (sM, sJ))
    a("s_and_b32 %s, %s, 3" % (sQ, sJ))
    a("s_cmp_ge_u32 %s, 9" % sJ)
    a("s_cselect_b32 %s, 1, 0" % sBL)
    a("s_mul_i32 %s, %s, 9" % (sT0, sBL))
    a("s_sub_u32 %s, %s, %s" % (sCB, sJ, sT0))
    a("s_getreg_b32 %s, hwreg(HW_REG_XCC_ID)" % sXCC)
    a("s_and_b32 %s, %s, 7" % (sXCC, sXCC))
    a("v_and_b32 v%d, 63, v0" % g.vLANE)
    a("v_lshrrev_b32 v%d, 6, v0" % T[0])
    a("v_readfirstlane_b32 %s, v%d" % (sW, T[0]))
    a("v_lshlrev_b32 v%d, 4, v%d" % (g.vL16, g.vLANE))
    a("v_mov_b32 v%d, %s" % (g.vK1, f2h(-K1)))
    a("v_mov_b32 v%d, 0" % g.vSTAMP)
    for i in range(4):
        a("v_mov_b32 v%d, 0x3f803f80" % (g.vONES + i))
    a("s_waitcnt lgkmcnt(0)")
    g.stamp()
    a("s_lshl_b32 %s, %s, 14" % (sT0, sM))
    a("s_lshl_b32 %s, %s, 14" % (sT1, sK))
    a("v_mov_b32 v%d, %s" % (T[0], sT0))
    a("v_mov_b32 v%d, %s" % (T[1], sT1))
    a.vmem("buffer_load_dword v%d, v%d, %s, 0 offen sc1" % (T[2], T[0], srd("ws")), "ep")
    a.vmem("buffer_load_dword v%d, v%d, %s, 0 offen sc1" % (T[3], T[1], srd("ws")), "ep")
    a.wait_vm()
    a("v_readfirstlane_b32 %s, v%d" % (sNM, T[2]))
    a("v_readfirstlane_b32 %s, v%d" % (sNK, T[3]))
    a("s_add_u32 %s, %s, 1" % (sNM, sNM))
    a("s_add_u32 %s, %s, 1" % (sNK, sNK))

    Lmlp = "L_mlp"
    a("s_cmp_ge_u32 %s, 18" % sJ)
    a("s_cbranch_scc1 %s" % Lmlp)

    L = g.vLANE
    a("s_lshl_b32 %s, %s, 1" % (sT0, sK))
    a("s_add_u32 %s, %s, %s" % (sT0, sT0, sBL))
    a("s_mul_i32 %s, %s, 36864" % (sT3, sT0))
    a("s_lshl_b32 %s, %s, 3" % (sT1, sW))
    a("v_lshrrev_b32 v%d, 3, v%d" % (T[0], L))
    a("v_add_u32 v%d, %s, v%d" % (T[0], sT1, T[0]))
    a("v_bfe_u32 v%d, v%d, 1, 3" % (T[1], T[0]))
    a("v_and_b32 v%d, 7, v%d" % (T[2], L))
    a("v_xor_b32 v%d, v%d, v%d" % (T[1], T[1], T[2]))
    a("v_mul_u32_u24 v%d, 1152, v%d" % (T[3], T[0]))
    a("v_lshl_add_u32 v%d, v%d, 4, v%d" % (g.vXD, T[1], T[3]))
    a("s_and_b32 %s, %s, 1" % (sT1, sW))
    a("s_lshl_b32 %s, %s, 2" % (sT1, sT1))
    a("v_lshrrev_b32 v%d, 3, v%d" % (T[1], L))
    a("v_and_b32 v%d, 2, v%d" % (T[1], T[1]))
    a("v_or_b32 v%d, %s, v%d" % (T[1], sT1, T[1]))
    a("v_xor_b32 v%d, v%d, v%d" % (T[1], T[1], T[2]))
    a("v_lshl_add_u32 v%d, v%d, 4, v%d" % (T[1], T[1], T[3]))
    a("s_lshl_b32 %s, %s, 7" % (sT1, sCB))
    a("v_add_u32 v%d, %s, v%d" % (g.vW12, sT1, T[1]))
    a("s_lshl_b32 %s, %s, 10" % (sM0, sW))
    if LA:
        a("s_add_u32 %s, %s, %d" % (sM0, sM0, LA))
    for kb in range(9):
        a("s_mov_b32 m0, %s" % sM0)
        a.vmem("buffer_load_dwordx4 v%d, %s, %s offen offset:%d lds" % (g.vXD, srd("x"), sT3, kb * 128), "x")
        if kb < 8:
            a("s_add_u32 %s, %s, %d" % (sM0, sM0, 4096 - 128))
    dma_w12(g, "w1")
    a("v_lshrrev_b32 v%d, 4, v%d" % (T[0], L))
    a("v_bfe_u32 v%d, v%d, 2, 2" % (T[1], L))
    a("v_lshl_add_u32 v%d, v%d, 3, v%d" % (T[0], T[0], T[1]))
    a("v_bfe_u32 v%d, v%d, 3, 2" % (T[1], L))
    a("v_xor_b32 v%d, %s, v%d" % (T[1], sW, T[1]))
    a("v_lshlrev_b32 v%d, 5, v%d" % (T[1], T[1]))
    a("v_lshl_add_u32 v%d, v%d, 7, v%d" % (T[0], T[0], T[1]))
    a("v_and_b32 v%d, 3, v%d" % (T[1], L))
    a("v_lshl_add_u32 v%d, v%d, 3, v%d" % (T[0], T[1], T[0]))
    a("v_add_u32 v%d, %d, v%d" % (g.vTR12, LB, T[0]))
    a("v_add_u32 v%d, %d, v%d" % (g.vTR12 + 1, LB + 9 * 4096, T[0]))
    a("v_and_b32 v%d, 15, v%d" % (T[0], L))
    a("v_bfe_u32 v%d, v%d, 1, 3" % (T[1], L))
    a("v_lshrrev_b32 v%d, 4, v%d" % (T[2], L))
    a("v_xor_b32 v%d, v%d, v%d" % (T[1], T[1], T[2]))
    a("v_lshlrev_b32 v%d, 4, v%d" % (T[1], T[1]))
    a("v_lshl_add_u32 v%d, v%d, 7, v%d" % (g.vXR, T[0], T[1]))
    a("v_xor_b32 v%d, 64, v%d" % (g.vXR + 1, g.vXR))
    a.wait_vm("x")
    a("s_lshl_b32 %s, %s, 10" % (sT0, sW))
    a("v_add_u32 v%d, %s, v%d" % (T[0], sT0, g.vL16))
    for kb in range(9):
        a.lds("ds_read_b128 %s, v%d offset:%d" % (vr(g.vXF + 4 * kb, 4), T[0], LA + kb * 4096), "st")
    for i in range(4):
        a("v_mov_b32 v%d, 0" % (T[4 + i]))
    a.wait_lg()
    for i in range(36):
        a("v_dot2c_f32_bf16 v%d, v%d, v%d" % (T[4 + (i & 1)], g.vXF + i, g.vONES))
        a("v_dot2c_f32_bf16 v%d, v%d, v%d" % (T[6 + (i & 1)], g.vXF + i, g.vXF + i))
    a("v_add_f32 v%d, v%d, v%d" % (T[4], T[4], T[5]))
    a("v_add_f32 v%d, v%d, v%d" % (T[5], T[6], T[7]))
    for mod in ("quad_perm:[1,0,3,2]", "quad_perm:[2,3,0,1]", "row_half_mirror"):
        a("v_add_f32_dpp v%d, v%d, v%d %s row_mask:0xf bank_mask:0xf" % (T[4], T[4], T[4], mod))
        a("v_add_f32_dpp v%d, v%d, v%d %s row_mask:0xf bank_mask:0xf" % (T[5], T[5], T[5], mod))
    a("v_mov_b32 v%d, v%d" % (g.vAB, T[4]))
    a("v_mov_b32 v%d, v%d" % (g.vAB + 1, T[5]))
    ln_scalars(g, g.vAB, g.vAB + 1, T[6])
    a("v_and_b32 v%d, 0x38, v%d" % (T[0], L))
    a("s_lshl_b32 %s, %s, 6" % (sT0, sW))
    a("v_add_u32 v%d, %s, v%d" % (T[0], sT0, T[0]))
    a("v_add_u32 v%d, %d, v%d" % (T[0], LST, T[0]))
    a.lds("ds_write_b64 v%d, %s" % (T[0], vr(g.vAB, 2)), "stw")
    a.wait_vm()
    a.wait_lg()
    a("s_barrier")
    g.stamp()
    tr_w12(g, 0)
    acc, cs = g.vACC, g.vCS

    def gemm_small(xaddr, withcs):
        def rd(t):
            for mt in range(2):
                base, off = xaddr(t, mt)
                a.lds("ds_read_b128 %s, v%d offset:%d" % (vr(g.vXF + 8 * (t & 3) + 4 * mt, 4), base, off), ("xs", t))
        rd(0)
        rd(1)
        for t in range(18):
            if t + 2 < 18:
                rd(t + 2)
            a.wait_lg(("xs", t))
            for mt in range(2):
                d = vr(acc + 4 * mt, 4)
                a("v_mfma_f32_16x16x32_bf16 %s, %s, %s, %s" % (d, ar(4 * t, 4), vr(g.vXF + 8 * (t & 3) + 4 * mt, 4),
                                                               d if t else "0"))
            if withcs:
                d = vr(cs, 4)
                a("v_mfma_f32_16x16x32_bf16 %s, %s, %s, %s" % (d, ar(4 * t, 4), vr(g.vONES, 4), d if t else "0"))

    gemm_small(lambda t, mt: (g.vXR + (t & 1), LA + (t >> 1) * 4096 + mt * 2048), True)
    a("v_and_b32 v%d, 15, v%d" % (T[0], L))
    a("v_lshlrev_b32 v%d, 3, v%d" % (T[0], T[0]))
    a("v_add_u32 v%d, %d, v%d" % (T[0], LST, T[0]))
    a.lds("ds_read_b64 %s, v%d" % (vr(g.vAB, 2), T[0]), "ab")
    a.lds("ds_read_b64 %s, v%d offset:128" % (vr(g.vAB + 2, 2), T[0]), "ab")
    a.wait_lg()
    a("s_barrier")
    dma_w12(g, "w2")
    for mt in range(2):
        for r in range(4):
            y = acc + 4 * mt + r
            a("v_mul_f32 v%d, v%d, v%d" % (y, g.vAB + 2 * mt, y))
            a("v_fmac_f32 v%d, v%d, v%d" % (y, g.vAB + 2 * mt + 1, cs + r))
    gelu(g, [acc + i for i in range(8)], [g.vTMP + i for i in range(8)])
    P = g.vTMP + 8
    for mt in range(2):
        for h in range(2):
            a("v_cvt_pk_bf16_f32 v%d, v%d, v%d" % (P + 2 * mt + h, acc + 4 * mt + 2 * h, acc + 4 * mt + 2 * h + 1))
    a("v_permlane16_swap_b32 v%d, v%d" % (P, P + 2))
    a("v_permlane16_swap_b32 v%d, v%d" % (P + 1, P + 3))
    a("s_lshl_b32 %s, %s, 2" % (sT0, sCB))
    a("s_add_u32 %s, %s, %s" % (sT0, sT0, sW))
    a("s_mov_b32 %s, 1" % sT1)
    a("s_cmp_ge_u32 %s, 9" % sT0)
    a("s_cselect_b32 %s, -1, %s" % (sT1, sT1))
    a("s_cmp_ge_u32 %s, 18" % sT0)
    a("s_cselect_b32 %s, 2, %s" % (sT1, sT1))
    a("s_cmp_ge_u32 %s, 27" % sT0)
    a("s_cselect_b32 %s, -2, %s" % (sT1, sT1))
    a("v_and_b32 v%d, 31, v%d" % (T[0], L))
    a("v_add_u32 v%d, %s, v%d" % (T[0], sT1, T[0]))
    a("v_cmp_gt_u32 vcc, 32, v%d" % T[0])
    for i in range(4):
        a("v_cndmask_b32 v%d, 0, v%d, vcc" % (P + i, P + i))
    a("v_and_b32 v%d, 15, v%d" % (T[1], T[0]))
    a("v_bfe_u32 v%d, v%d, 4, 1" % (T[0], T[0]))
    a("v_lshlrev_b32 v%d, 10, v%d" % (T[0], T[0]))
    a("v_lshl_add_u32 v%d, v%d, 4, v%d" % (T[0], T[1], T[0]))
    a("v_lshrrev_b32 v%d, 5, v%d" % (T[1], L))
    a("v_lshl_add_u32 v%d, v%d, 8, v%d" % (T[0], T[1], T[0]))
    a("s_lshr_b32 %s, %s, 1" % (sT1, sT0))
    a("s_lshl_b32 %s, %s, 11" % (sT1, sT1))
    a("s_and_b32 %s, %s, 1" % (sT2, sT0))
    a("s_lshl_b32 %s, %s, 9" % (sT2, sT2))
    a("s_add_u32 %s, %s, %s" % (sT1, sT1, sT2))
    a("s_add_u32 %s, %s, %s" % (sT1, sT1, sT3))
    a("s_add_u32 %s, %s, %d" % (sT1, sT1, HS))
    a.vmem("buffer_store_dwordx4 %s, v%d, %s, %s offen" % (vr(P, 4), T[0], srd("ws"), sT1), "hs")
    g.stamp()
    signal_local(g, 0x10)
    tr_w12(g, 0)
    a("s_mul_i32 %s, %s, 72" % (sT2, sBL))
    a("s_add_u32 %s, %s, %s" % (sT2, sT2, sK))
    a("s_lshl_b32 s58, %s, 14" % sK)
    a("s_mul_i32 %s, %s, %d" % (sT0, sBL, 9 * 128))
    a("s_add_u32 s58, s58, %s" % sT0)
    a("s_add_u32 s58, s58, %d" % (FL + FL_G1))
    wait_local(g, 0x10, 9, sT2, "s58", sCB, sNK)
    g.stamp()

    a("s_add_u32 %s, %s, %d" % (sT1, sT3, HS))
    dma_linear(g, LA + 36864, sT1, 9, "sc1")
    a("v_and_b32 v%d, 15, v%d" % (T[0], L))
    a("v_bfe_u32 v%d, v%d, 1, 3" % (T[1], L))
    a("v_lshrrev_b32 v%d, 5, v%d" % (T[2], L))
    a("s_lshl_b32 %s, %s, 1" % (sT0, sW))
    a("v_add_u32 v%d, %s, v%d" % (T[2], sT0, T[2]))
    a("v_xor_b32 v%d, v%d, v%d" % (T[1], T[1], T[2]))
    a("v_lshlrev_b32 v%d, 4, v%d" % (T[1], T[1]))
    a("v_lshl_add_u32 v%d, v%d, 7, v%d" % (T[0], T[0], T[1]))
    a("v_bfe_u32 v%d, v%d, 4, 1" % (T[1], L))
    a("v_lshl_add_u32 v%d, v%d, 3, v%d" % (T[0], T[1], T[0]))
    a("s_lshl_b32 %s, %s, 12" % (sT0, sCB))
    a("v_add_u32 v%d, %s, v%d" % (T[0], sT0, T[0]))
    a.lds("ds_read_b64 %s, v%d offset:%d" % (vr(g.vAB, 2), T[0], LA), "res")
    a.lds("ds_read_b64 %s, v%d offset:%d" % (vr(g.vAB + 2, 2), T[0], LA + 2048), "res")
    a("v_add_u32 v%d, %d, v%d" % (T[8], LA + 36864, g.vL16))
    a.wait_vm()
    a.wait_lg()
    a("s_barrier")
    g.stamp()
    gemm_small(lambda t, mt: (T[8], t * 2048 + mt * 1024), False)
    for mt in range(2):
        for h in range(2):
            p = P + 2 * mt + h
            x = g.vAB + 2 * mt + h
            a("v_cvt_pk_bf16_f32 v%d, v%d, v%d" % (p, acc + 4 * mt + 2 * h, acc + 4 * mt + 2 * h + 1))
            a("v_lshlrev_b32 v%d, 16, v%d" % (T[0], p))
            a("v_and_b32 v%d, 0xffff0000, v%d" % (T[1], p))
            a("v_lshlrev_b32 v%d, 16, v%d" % (T[2], x))
            a("v_and_b32 v%d, 0xffff0000, v%d" % (T[3], x))
            a("v_add_f32 v%d, v%d, v%d" % (T[0], T[0], T[2]))
            a("v_add_f32 v%d, v%d, v%d" % (T[1], T[1], T[3]))
            a("v_cvt_pk_bf16_f32 v%d, v%d, v%d" % (p, T[0], T[1]))
    a("v_permlane16_swap_b32 v%d, v%d" % (P, P + 2))
    a("v_permlane16_swap_b32 v%d, v%d" % (P + 1, P + 3))
    a("v_and_b32 v%d, 15, v%d" % (T[1], L))
    a("v_bfe_u32 v%d, v%d, 4, 1" % (T[0], L))
    a("v_lshlrev_b32 v%d, 10, v%d" % (T[0], T[0]))
    a("v_lshl_add_u32 v%d, v%d, 4, v%d" % (T[0], T[1], T[0]))
    a("v_lshrrev_b32 v%d, 5, v%d" % (T[1], L))
    a("v_lshl_add_u32 v%d, v%d, 8, v%d" % (T[0], T[1], T[0]))
    a("s_lshl_b32 %s, %s, 2" % (sT0, sCB))
    a("s_add_u32 %s, %s, %s" % (sT0, sT0, sW))
    a("s_lshr_b32 %s, %s, 1" % (sT1, sT0))
    a("s_lshl_b32 %s, %s, 12" % (sT1, sT1))
    a("s_and_b32 %s, %s, 1" % (sT2, sT0))
    a("s_lshl_b32 %s, %s, 9" % (sT2, sT2))
    a("s_add_u32 %s, %s, %s" % (sT1, sT1, sT2))
    a("s_lshl_b32 %s, %s, 11" % (sT2, sBL))
    a("s_add_u32 %s, %s, %s" % (sT1, sT1, sT2))
    a("s_mul_i32 %s, %s, 73728" % (sT2, sK))
    a("s_add_u32 %s, %s, %s" % (sT1, sT1, sT2))
    a("s_add_u32 %s, %s, %d" % (sT1, sT1, X1))
    a.vmem("buffer_store_dwordx4 %s, v%d, %s, %s offen sc1" % (vr(P, 4), T[0], srd("ws"), sT1), "x1")
    a("s_lshl_b32 s58, %s, 14" % sK)
    a("s_lshl_b32 %s, %s, 7" % (sT0, sJ))
    a("s_add_u32 s58, s58, %s" % sT0)
    a("s_add_u32 s58, s58, %d" % (FL + FL_F2))
    g.stamp()
    signal_dev(g, "s58", sNK)
    a("s_barrier")
    g.nstamp = 6

    a(Lmlp + ":")
    a.vm = []
    a("v_lshrrev_b32 v%d, 2, v%d" % (T[0], L))
    a("v_mul_u32_u24 v%d, 288, v%d" % (T[0], T[0]))
    a("v_and_b32 v%d, 3, v%d" % (T[1], L))
    a("v_lshl_add_u32 v%d, v%d, 3, v%d" % (T[0], T[1], T[0]))
    a("s_lshl_b32 %s, %s, 6" % (sT0, sW))
    a("s_add_u32 %s, %s, %d" % (sT0, sT0, LB))
    a("v_add_u32 v%d, %s, v%d" % (g.vTRB, sT0, T[0]))
    a("v_add_u32 v%d, 36864, v%d" % (g.vTRB + 1, g.vTRB))
    a("v_add_u32 v%d, %d, v%d" % (g.vTRB + 2, LB + 256, T[0]))
    a("v_add_u32 v%d, 36864, v%d" % (g.vTRB + 3, g.vTRB + 2))
    for i in range(4):
        a("s_add_u32 %s, %s, %d" % (sT0, sW, i))
        a("s_and_b32 %s, %s, 3" % (sT0, sT0))
        a("s_lshl_b32 %s, %s, 10" % (sT0, sT0))
        if LA:
            a("s_add_u32 %s, %s, %d" % (sT0, sT0, LA))
        a("v_add_u32 v%d, %s, v%d" % (g.vXA0 + i, sT0, g.vL16))
    a("s_mul_i32 s58, %s, 1152" % sK)
    a("s_mul_i32 %s, %s, 288" % (sT0, sQ))
    a("s_add_u32 s58, s58, %s" % sT0)
    addr_wbig(g, 9216, "s58")
    stream_big(g, "w3", 9216, 0)
    for c in range(3):
        for t in range(18):
            d = vr(cs + 4 * c, 4)
            a("v_mfma_f32_16x16x32_bf16 %s, %s, %s, %s" % (d, ar(12 * t + 4 * c, 4), vr(g.vONES, 4), d if t else "0"))
    g.stamp()
    a("s_lshl_b32 s58, %s, 14" % sM)
    a("s_add_u32 s58, s58, %d" % (FL + FL_F2))
    wait_dev(g, 18, "s58", 7, sNM)
    g.stamp()
    a("s_mul_i32 %s, %s, 73728" % (sT1, sM))
    a("s_add_u32 %s, %s, %d" % (sT1, sT1, X1))
    dma_linear(g, LA, sT1, 18, "sc1")
    a.wait_vm()
    a("s_barrier")
    g.stamp()
    def res_addr(dst, nt_expr):
        a("v_bfe_u32 v%d, v%d, 3, 2" % (T[0], L))
        a("v_lshlrev_b32 v%d, 2, v%d" % (T[0], T[0]))
        nt_expr(T[1])
        a("v_lshl_add_u32 v%d, v%d, 4, v%d" % (T[0], T[1], T[0]))
        a("s_mul_i32 %s, %s, 144" % (sT0, sQ))
        a("v_add_u32 v%d, %s, v%d" % (dst, sT0, T[0]))
    def res_lds(n, dst):
        a("v_lshrrev_b32 v%d, 5, v%d" % (T[0], n))
        a("v_lshlrev_b32 v%d, 12, v%d" % (T[0], T[0]))
        a("v_bfe_u32 v%d, v%d, 3, 2" % (T[1], n))
        a("v_lshl_add_u32 v%d, v%d, 8, v%d" % (T[0], T[1], T[0]))
        a("v_and_b32 v%d, 7, v%d" % (T[1], n))
        a("v_lshl_add_u32 v%d, v%d, 1, v%d" % (T[0], T[1], T[0]))
        a("v_and_b32 v%d, 7, v%d" % (T[1], L))
        a("v_lshl_add_u32 v%d, v%d, 4, v%d" % (T[0], T[1], T[0]))
        a("s_lshr_b32 %s, %s, 1" % (sT0, sK))
        a("s_lshl_b32 %s, %s, 10" % (sT0, sT0))
        a("s_and_b32 %s, %s, 1" % (sT1, sK))
        a("s_lshl_b32 %s, %s, 7" % (sT1, sT1))
        a("s_add_u32 %s, %s, %s" % (sT0, sT0, sT1))
        if LA:
            a("s_add_u32 %s, %s, %d" % (sT0, sT0, LA))
        a("v_add_u32 v%d, %s, v%d" % (T[0], sT0, T[0]))
        a.lds("ds_read_b64 %s, v%d" % (vr(dst, 2), T[0]), "res")
    def nt_main(d):
        a("v_lshrrev_b32 v%d, 5, v%d" % (d, L))
        a("s_lshl_b32 %s, %s, 1" % (sT0, sW))
        a("v_add_u32 v%d, %s, v%d" % (d, sT0, d))
    res_addr(T[10], nt_main)
    res_lds(T[10], g.vRES)
    res_addr(T[11], lambda d: a("v_mov_b32 v%d, 8" % d))
    res_lds(T[11], g.vRES + 2)
    gemm_big(g, 0, acc, (g.vSS, g.vSS + 4))
    g.stamp()
    a("v_and_b32 v%d, 3, v%d" % (T[0], L))
    a("v_cmp_eq_u32 vcc, 1, v%d" % T[0])
    a("v_cndmask_b32 v%d, v%d, v%d, vcc" % (T[1], g.vSS + 4, g.vSS + 5))
    a("v_cmp_eq_u32 vcc, 2, v%d" % T[0])
    a("v_cndmask_b32 v%d, v%d, v%d, vcc" % (T[1], T[1], g.vSS + 6))
    a("v_cmp_eq_u32 vcc, 3, v%d" % T[0])
    a("v_cndmask_b32 v%d, v%d, v%d, vcc" % (T[1], T[1], g.vSS + 7))
    a("v_mov_b32 v%d, v%d" % (g.vAB, g.vSS))
    a("v_mov_b32 v%d, v%d" % (g.vAB + 1, T[1]))
    ln_scalars(g, g.vAB, g.vAB + 1, T[2])
    a("v_and_b32 v%d, 15, v%d" % (T[0], L))
    a("v_lshrrev_b32 v%d, 2, v%d" % (T[1], T[0]))
    a("v_lshrrev_b32 v%d, 4, v%d" % (T[2], L))
    a("v_cmp_eq_u32 vcc, v%d, v%d" % (T[1], T[2]))
    a("v_lshlrev_b32 v%d, 3, v%d" % (T[0], T[0]))
    a("s_lshl_b32 %s, %s, 7" % (sT0, sW))
    a("s_add_u32 %s, %s, %d" % (sT0, sT0, LST))
    a("v_add_u32 v%d, %s, v%d" % (T[1], sT0, T[0]))
    a("s_and_saveexec_b64 s[62:63], vcc")
    a.lds("ds_write_b64 v%d, %s" % (T[1], vr(g.vAB, 2)), "stw")
    a("s_mov_b64 exec, s[62:63]")
    a.wait_lg()
    a("s_barrier")
    for i in range(4):
        a("s_add_u32 %s, %s, %d" % (sT0, sW, i))
        a("s_and_b32 %s, %s, 3" % (sT0, sT0))
        a("s_lshl_b32 %s, %s, 7" % (sT0, sT0))
        a("s_add_u32 %s, %s, %d" % (sT0, sT0, LST))
        a("v_add_u32 v%d, %s, v%d" % (T[1], sT0, T[0]))
        a.lds("ds_read_b64 %s, v%d" % (vr(g.vAB + 2 * i, 2), T[1]), "ab")
    a.wait_lg()
    for c in range(3):
        for i in range(4 if c < 2 else 1):
            for r in range(4):
                y = acc + 16 * c + 4 * i + r
                a("v_mul_f32 v%d, v%d, v%d" % (y, g.vAB + 2 * i, y))
                a("v_fmac_f32 v%d, v%d, v%d" % (y, g.vAB + 2 * i + 1, cs + 4 * c + r))
    gelu(g, [acc + i for i in range(36)], [g.vTMP + i for i in range(36)])
    P = g.vTMP
    for i in range(18):
        a("v_cvt_pk_bf16_f32 v%d, v%d, v%d" % (P + i, acc + 2 * i, acc + 2 * i + 1))
    a("v_and_b32 v%d, 15, v%d" % (T[0], L))
    a("v_lshlrev_b32 v%d, 4, v%d" % (T[0], T[0]))
    a("v_lshrrev_b32 v%d, 5, v%d" % (T[1], L))
    a("v_lshl_add_u32 v%d, v%d, 8, v%d" % (T[0], T[1], T[0]))
    a("v_bfe_u32 v%d, v%d, 4, 1" % (T[1], L))
    a("v_add_u32 v%d, %s, v%d" % (T[2], sW, T[1]))
    a("v_and_b32 v%d, 3, v%d" % (T[3], T[2]))
    a("v_lshl_add_u32 v%d, v%d, 10, v%d" % (T[4], T[3], T[0]))
    a("v_xor_b32 v%d, 0x800, v%d" % (T[5], T[4]))
    a("v_lshl_add_u32 v%d, v%d, 3, v%d" % (T[6], T[1], T[0]))
    a("s_lshl_b32 %s, %s, 10" % (sT0, sW))
    a("v_add_u32 v%d, %s, v%d" % (T[6], sT0, T[6]))
    a("s_lshl_b32 %s, %s, 3" % (sT3, sK))
    a("s_add_u32 %s, %s, %s" % (sT3, sT3, sM))
    a("s_mul_i32 %s, %s, 73728" % (sT3, sT3))
    a("s_add_u32 %s, %s, %d" % (sT3, sT3, H2A))
    for c in range(3):
        a("s_mul_i32 %s, %s, 9" % (sT0, sQ))
        if c < 2:
            a("s_lshl_b32 %s, %s, 1" % (sT1, sW))
            a("s_add_u32 %s, %s, %s" % (sT0, sT0, sT1))
            if c:
                a("s_add_u32 %s, %s, 1" % (sT0, sT0))
        else:
            a("s_add_u32 %s, %s, 8" % (sT0, sT0))
        a("s_lshr_b32 %s, %s, 1" % (sT1, sT0))
        a("s_lshl_b32 %s, %s, 12" % (sT1, sT1))
        a("s_and_b32 %s, %s, 1" % (sT0, sT0))
        a("s_lshl_b32 %s, %s, 9" % (sT0, sT0))
        a("s_add_u32 %s, %s, %s" % (sT1, sT1, sT0))
        a("s_add_u32 %s, %s, %s" % (sT1, sT1, sT3))
        if c < 2:
            for p in range(2):
                b = P + 8 * c + 4 * p
                a("v_permlane16_swap_b32 v%d, v%d" % (b, b + 2))
                a("v_permlane16_swap_b32 v%d, v%d" % (b + 1, b + 3))
                a.vmem("buffer_store_dwordx4 %s, v%d, %s, %s offen" % (vr(b, 4), T[4 + p], srd("ws"), sT1), "h2a")
        else:
            a.vmem("buffer_store_dwordx2 %s, v%d, %s, %s offen" % (vr(P + 16, 2), T[6], srd("ws"), sT1), "h2a")
    g.stamp()
    signal_local(g, 0x30)

    a("s_mul_i32 s58, %s, %d" % (sK, 576 * 1152))
    a("s_mul_i32 %s, %s, 288" % (sT0, sQ))
    a("s_add_u32 s58, s58, %s" % sT0)
    addr_wbig(g, 1152, "s58")
    stream_big(g, "w4", 1152, 0)
    g.stamp()
    a("s_lshl_b32 %s, %s, 5" % (sT2, sM))
    a("s_add_u32 %s, %s, %s" % (sT2, sT2, sK))
    a("s_lshl_b32 s58, %s, 14" % sM)
    a("s_lshl_b32 %s, %s, 9" % (sT0, sK))
    a("s_add_u32 s58, s58, %s" % sT0)
    a("s_add_u32 s58, s58, %d" % (FL + FL_G3))
    wait_local(g, 0x20, 4, sT2, "s58", sQ, sNM)
    g.stamp()
    dma_linear(g, LA, sT3, 18, "sc1")
    a.wait_vm()
    a("s_barrier")
    g.stamp()
    gemm_big(g, 0, acc, None)
    g.stamp()
    a("v_and_b32 v%d, 7, v%d" % (T[0], L))
    a("v_lshrrev_b32 v%d, 4, v%d" % (T[1], L))
    a("v_lshl_add_u32 v%d, v%d, 3, v%d" % (T[0], T[1], T[0]))
    a("v_lshlrev_b32 v%d, 4, v%d" % (T[0], T[0]))
    a("v_bfe_u32 v%d, v%d, 3, 1" % (T[1], L))
    a("v_mul_u32_u24 v%d, 36864, v%d" % (T[1], T[1]))
    a("v_add_u32 v%d, v%d, v%d" % (T[0], T[0], T[1]))
    a("s_mul_i32 %s, %s, %d" % (sT3, sJ, 64 * 4608))
    a("s_add_u32 %s, %s, %d" % (sT3, sT3, PART))
    a("s_mul_i32 %s, %s, 4608" % (sT2, sK))
    a("s_add_u32 %s, %s, %s" % (sT2, sT2, sT3))
    for i in range(4):
        a("s_add_u32 %s, %s, %d" % (sT0, sW, i))
        a("s_and_b32 %s, %s, 3" % (sT0, sT0))
        a("s_mul_i32 %s, %s, %d" % (sT0, sT0, 2 * 36864))
        a("s_add_u32 %s, %s, %s" % (sT0, sT0, sT2))
        if i == 0:
            a("s_add_u32 %s, %s, 4096" % (sT1, sT0))
            a.vmem("buffer_store_dwordx4 %s, v%d, %s, %s offen sc1" % (vr(acc + 32, 4), T[0], srd("ws"), sT1), "part")
        a("s_lshl_b32 %s, %s, 10" % (sT1, sW))
        a("s_add_u32 %s, %s, %s" % (sT0, sT0, sT1))
        for c in range(2):
            a.vmem("buffer_store_dwordx4 %s, v%d, %s, %s offen offset:%d sc1" % (vr(acc + 16 * c + 4 * i, 4), T[0], srd("ws"),
                                                                               sT0, 512 * c), "part")
    a("s_lshl_b32 s59, %s, 14" % sM)
    a("s_lshl_b32 %s, %s, 10" % (sT0, sQ))
    a("s_add_u32 s59, s59, %s" % sT0)
    a("s_add_u32 s59, s59, %d" % (FL + FL_F4))
    a("s_lshl_b32 %s, %s, 7" % (sT0, sK))
    a("s_add_u32 s58, s59, %s" % sT0)
    signal_dev(g, "s58", sNM)
    g.stamp()
    wait_dev(g, 8, "s59", 7, sNM)
    g.stamp()

    a("s_mul_i32 %s, %s, 36864" % (sT2, sK))
    a("s_add_u32 %s, %s, %s" % (sT2, sT2, sT3))
    a("s_lshl_b32 %s, %s, 10" % (sT0, sW))
    a("s_add_u32 %s, %s, %s" % (sT0, sT0, sT2))
    for s in range(8):
        a.vmem("buffer_load_dwordx4 %s, v%d, %s, %s offen sc1" % (vr(g.vXF + 4 * s, 4), g.vL16, srd("ws"), sT0), "fin")
        if s < 7:
            a("s_add_u32 %s, %s, 4608" % (sT0, sT0))
    a("v_and_b32 v%d, 31, v%d" % (T[0], L))
    a("v_lshlrev_b32 v%d, 4, v%d" % (T[0], T[0]))
    a("v_lshrrev_b32 v%d, 5, v%d" % (T[1], L))
    a("v_mul_u32_u24 v%d, %d, v%d" % (T[1], 4 * 4608, T[1]))
    a("v_add_u32 v%d, v%d, v%d" % (T[0], T[0], T[1]))
    a("s_add_u32 %s, %s, 4096" % (sT0, sT2))
    for s in range(4):
        a.vmem("buffer_load_dwordx4 %s, v%d, %s, %s offen sc1" % (vr(acc + 4 * s, 4), T[0], srd("ws"), sT0), "fin")
        if s < 3:
            a("s_add_u32 %s, %s, 4608" % (sT0, sT0))
    a("v_and_b32 v%d, 7, v%d" % (T[0], L))
    a("v_mul_u32_u24 v%d, 1152, v%d" % (T[0], T[0]))
    a("v_lshl_add_u32 v%d, v%d, 1, v%d" % (T[10], T[10], T[0]))
    a("v_lshl_add_u32 v%d, v%d, 1, v%d" % (T[11], T[11], T[0]))
    a("s_lshl_b32 %s, %s, 3" % (sT0, sM))
    a("s_add_u32 %s, %s, %s" % (sT0, sT0, sK))
    a("s_mul_i32 %s, %s, %d" % (sT1, sT0, 8 * 1152))
    a.wait_vm()
    X = g.vXF
    for step in (4, 2, 1):
        for s in range(step):
            for r in range(4):
                a("v_add_f32 v%d, v%d, v%d" % (X + 4 * s + r, X + 4 * s + r, X + 4 * (s + step) + r))
    for step in (2, 1):
        for s in range(step):
            for r in range(4):
                a("v_add_f32 v%d, v%d, v%d" % (acc + 4 * s + r, acc + 4 * s + r, acc + 4 * (s + step) + r))
    for r in range(4):
        a("v_mov_b32 v%d, v%d" % (acc + 4 + r, acc + r))
    for r in range(4):
        a("v_permlane32_swap_b32 v%d, v%d" % (acc + r, acc + 4 + r))
    for r in range(4):
        a("v_add_f32 v%d, v%d, v%d" % (acc + r, acc + r, acc + 4 + r))

    def fin(src, res, dst):
        for h in range(2):
            a("v_cvt_pk_bf16_f32 v%d, v%d, v%d" % (dst + h, src + 2 * h, src + 2 * h + 1))
            a("v_lshlrev_b32 v%d, 16, v%d" % (T[0], dst + h))
            a("v_and_b32 v%d, 0xffff0000, v%d" % (T[1], dst + h))
            a("v_lshlrev_b32 v%d, 16, v%d" % (T[2], res + h))
            a("v_and_b32 v%d, 0xffff0000, v%d" % (T[3], res + h))
            a("v_add_f32 v%d, v%d, v%d" % (T[0], T[0], T[2]))
            a("v_add_f32 v%d, v%d, v%d" % (T[1], T[1], T[3]))
            a("v_cvt_pk_bf16_f32 v%d, v%d, v%d" % (dst + h, T[0], T[1]))
    fin(X, g.vRES, g.vAB)
    fin(acc, g.vRES + 2, g.vAB + 2)
    a("buffer_store_dwordx2 %s, v%d, %s, %s offen" % (vr(g.vAB, 2), T[10], srd("out"), sT1))
    Lx = a.label("fin")
    a("s_cmp_lg_u32 %s, 0" % sW)
    a("s_cbranch_scc1 %s" % Lx)
    a("s_mov_b32 exec_hi, 0")
    a("buffer_store_dwordx2 %s, v%d, %s, %s offen" % (vr(g.vAB + 2, 2), T[11], srd("out"), sT1))
    a("s_or_b32 %s, %s, %s" % (sT0, sK, sQ))
    a("s_cmp_lg_u32 %s, 0" % sT0)
    a("s_cbranch_scc1 %s" % Lx)
    a("s_lshl_b32 %s, %s, 14" % (sT0, sM))
    a("v_mov_b32 v%d, %s" % (T[0], sT0))
    a("v_mov_b32 v%d, %s" % (T[1], sNM))
    a("s_mov_b64 exec, 1")
    a("buffer_store_dword v%d, v%d, %s, 0 offen sc1" % (T[1], T[0], srd("ws")))
    a(Lx + ":")
    if stamps:
        a("s_mov_b64 exec, -1")
        a("s_waitcnt vmcnt(0)")
        g.stamp()
        a("s_cmp_lg_u32 %s, 0" % sW)
        a("s_cbranch_scc1 %s" % Lend)
        a("s_lshl_b32 %s, s2, 8" % sT0)
        a("s_add_u32 %s, %s, %d" % (sT0, sT0, STAMP))
        a("v_lshlrev_b32 v%d, 2, v%d" % (T[0], L))
        a("buffer_store_dword v%d, v%d, %s, %s offen" % (g.vSTAMP, T[0], srd("ws"), sT0))
    a(Lend + ":")
    a("s_endpgm")

    body = a.text()
    src = HEADER + "; @launch grid=(256,1,1) block=(256,1,1) lds=%d\n" % LDS_BYTES
    src += '.amdgcn_target "amdgcn-amd-amdhsa--gfx950"\n.text\n.globl %s_kernel\n.p2align 8\n.type %s_kernel,@function\n%s_kernel:\n' % (NAME, NAME, NAME)
    src += body
    src += '''.section .rodata,"a"
.p2align 6
.amdhsa_kernel %s_kernel
  .amdhsa_next_free_vgpr 512
  .amdhsa_next_free_sgpr 80
  .amdhsa_accum_offset 256
  .amdhsa_group_segment_fixed_size 0
  .amdhsa_kernarg_size 64
  .amdhsa_user_sgpr_count 2
  .amdhsa_user_sgpr_kernarg_segment_ptr 1
  .amdhsa_system_sgpr_workgroup_id_x 1
.end_amdhsa_kernel
''' % NAME
    return src


if __name__ == "__main__":
    out = sys.argv[1]
    open(out, "w").write(build(stamps="stamps" in sys.argv[2:], teamshift="teamshift" in sys.argv[2:]))
```

```python
import sys, struct
from asmlib import Asm

NAME = "standalone__mixer_s_mlp__sampling"
HEADER = open("cdna_kernels/%s.s.ref" % NAME).read().split("; Override")[0]

FL = 0
FL_F4, FL_G1, FL_G3, FL_F2 = 128, 128 * 33, 128 * 51, 16384
FLS = 15
HS = 0x40000
X1 = 0x100000
H2A = 0x200000
PART = 0x800000
STAMP = 0x2000000
LA, LB, LST = 0, 73728, 147456
LA2 = LA + 36864
LPS = LST + 512
LDS_BYTES = 163840
SLOT = 18432

SRD = dict(x=8, w1=12, w2=16, w3=20, w4=24, out=28, dbg=32, ws=36)
SIZES = dict(x=589824, w1=663552, w2=663552, w3=5308416, w4=5308416, out=589824, dbg=256, ws=268435456)
srd = lambda n: "s[%d:%d]" % (SRD[n], SRD[n] + 3)
sK, sJ, sM, sQ, sW, sBL, sCB, sXCC, sNM, sNK = ["s%d" % i for i in range(40, 50)]
sT0, sT1, sT2, sT3, sOFF, sCNT, sM0, sWG = ["s%d" % i for i in range(50, 58)]
sU0, sU1 = "s58", "s59"
sSTAMP = "s[60:61]"
sW10, sWB, sH2A = "s66", "s67", "s68"
sC1 = "s[72:73]"
sW0M = "s[74:75]"
sHSO, sX1O = "s78", "s79"
sST = ["s80", "s81", "s82", "s83", "s84"]
K0 = 2.0 * 0.7978845608028654 * 1.4426950408889634
K1 = K0 * 0.044715


def f2h(x):
    return "0x%08x" % struct.unpack("<I", struct.pack("<f", x))[0]


def vr(b, n):
    return "v[%d:%d]" % (b, b + n - 1) if n > 1 else "v%d" % b


def ar(b, n):
    return "a[%d:%d]" % (b, b + n - 1) if n > 1 else "a%d" % b


class G:
    def __init__(self, opts):
        self.a = Asm()
        self.o = opts
        self.stamps = "stamps" in opts
        self.nv = 0
        self.nstamp = 0
        self.q = []
        self.q2 = []
        self.clk = 0
        self.gap = self.opt('gap', 72)

    def v(self, n=1, align=1):
        self.nv = (self.nv + align - 1) // align * align
        r = self.nv
        self.nv += n
        assert self.nv <= 256, self.nv
        return r

    def stamp(self, i=None):
        if i is not None:
            self.nstamp = i
        if not self.stamps:
            return
        a = self.a
        i = self.nstamp
        self.nstamp += 1
        a("s_memrealtime %s" % sSTAMP)
        a("s_waitcnt lgkmcnt(0)")
        a.lg = []
        a("v_writelane_b32 v%d, s60, %d" % (self.vSTAMP, i))

    def nt(self, name):
        return " nt" if ("nt_" + name) in self.o else ""

    def opt(self, name, default):
        for o in self.o:
            if o.startswith(name + "="):
                return int(o[len(name) + 1:])
        return default

    def fill(self, n=None, cyc=0):
        self.clk += cyc

        def emit(f):
            for kind, text, tag in f:
                if kind == "vm":
                    self.a.vmem(text, tag)
                    self.clk = 0
                elif kind == "lds":
                    self.a.lds(text, tag)
                else:
                    self.a(text)
            return len(f)
        if n is None:
            while self.q:
                emit(self.q.pop(0))
            while self.q2:
                emit(self.q2.pop(0))
            return
        while n > 0:
            if self.q and (self.clk >= self.gap or not any(k == "vm" for k, _, _ in self.q[0])):
                n -= emit(self.q.pop(0))
            elif self.q2:
                n -= emit(self.q2.pop(0))
            else:
                break

    def burst(self, nvm):
        while nvm > 0 and self.q:
            f = self.q[0]
            nvm -= sum(k == "vm" for k, _, _ in f)
            self.clk = self.gap
            self.fill(1)


I = lambda text: [("i", text, None)]
VM = lambda text, tag: [("vm", text, tag)]
LD = lambda text, tag: [("lds", text, tag)]


def gelu_pk(g, y, t, n, pace=0):
    a = g.a
    prs = [(y + i, t + i) for i in range(0, n, 2)]
    for r, u in prs:
        a("v_pk_mul_f32 %s, %s, %s" % (vr(u, 2), vr(r, 2), vr(r, 2)))
    for r, u in prs:
        a("v_pk_fma_f32 %s, %s, %s, %s" % (vr(u, 2), vr(u, 2), sC1, vr(g.vK0, 2)))
    for r, u in prs:
        a("v_pk_mul_f32 %s, %s, %s" % (vr(u, 2), vr(u, 2), vr(r, 2)))
    for i in range(n):
        a("v_exp_f32 v%d, v%d" % (t + i, t + i))
        g.fill(pace, 16)
    for r, u in prs:
        a("v_pk_add_f32 %s, %s, 1.0 op_sel_hi:[1,0]" % (vr(u, 2), vr(u, 2)))
    for i in range(n):
        a("v_rcp_f32 v%d, v%d" % (t + i, t + i))
        g.fill(pace, 16)
    for r, u in prs:
        a("v_pk_mul_f32 %s, %s, %s" % (vr(r, 2), vr(r, 2), vr(u, 2)))


def ln_fix(g, y, ab, cs):
    a = g.a
    for h in (0, 2):
        a("v_pk_mul_f32 %s, %s, %s op_sel_hi:[1,0]" % (vr(y + h, 2), vr(y + h, 2), vr(ab, 2)))
    for h in (0, 2):
        a("v_pk_fma_f32 %s, %s, %s, %s op_sel:[0,1,0]" % (vr(y + h, 2), vr(cs + h, 2), vr(ab, 2), vr(y + h, 2)))


def ln_scalars(g, s, q, t):
    a = g.a
    a("v_mul_f32 v%d, %s, v%d" % (s, f2h(1.0 / 576), s))
    a("v_mul_f32 v%d, %s, v%d" % (q, f2h(1.0 / 576), q))
    a("v_fma_f32 v%d, -v%d, v%d, v%d" % (q, s, s, q))
    a("v_max_f32 v%d, 0, v%d" % (q, q))
    a("v_cvt_pk_bf16_f32 v%d, v%d, v%d" % (t, s, q))
    a("v_lshlrev_b32 v%d, 16, v%d" % (s, t))
    a("v_and_b32 v%d, 0xffff0000, v%d" % (q, t))
    a("v_add_f32 v%d, %s, v%d" % (q, f2h(1e-5), q))
    a("v_cvt_pk_bf16_f32 v%d, v%d, v%d" % (t, q, q))
    a("v_lshlrev_b32 v%d, 16, v%d" % (q, t))
    a("v_sqrt_f32 v%d, v%d" % (q, q))
    a("v_cvt_pk_bf16_f32 v%d, v%d, v%d" % (t, q, q))
    a("v_lshlrev_b32 v%d, 16, v%d" % (q, t))
    a("v_rcp_f32 v%d, v%d" % (t, q))
    a("v_mul_f32 v%d, -v%d, v%d" % (q, s, t))
    a("v_mov_b32 v%d, v%d" % (s, t))


def signal_local(g, val, tag):
    a = g.a
    a("s_or_b32 %s, %s, %d" % (sT0, sXCC, val))
    a("v_mov_b32 v%d, %s" % (g.vT[0], sT0))
    a("v_mov_b32 v%d, %s" % (g.vT[1], sWG))
    a.wait_vm(tag)
    a("s_barrier")
    a("s_mov_b64 exec, %s" % sW0M)
    a("buffer_store_byte v%d, v%d, %s, 0 offen" % (g.vT[0], g.vT[1], srd("dbg")))
    a("s_mov_b64 exec, -1")


def wait_local(g, val, n, first_s, goff_s, me_s, nonce):
    a = g.a
    Ld, L1, L2, Ls = a.label("wl_done"), a.label("wl_fast"), a.label("wl_slow"), a.label("wl_pub")
    t0, t1, t2, t3 = g.vT[:4]
    a("s_cmp_lg_u32 %s, 0" % sW)
    a("s_cbranch_scc1 %s" % Ld)
    a("v_min_u32 v%d, %d, v%d" % (t1, n - 1, g.vLANE))
    a("v_lshl_add_u32 v%d, v%d, 3, %s" % (t0, t1, first_s))
    a("s_or_b32 %s, %s, %d" % (sT0, sXCC, val))
    a("s_mov_b32 %s, 0" % sCNT)
    a(L1 + ":")
    a("buffer_load_ubyte v%d, v%d, %s, 0 offen sc1" % (t2, t0, srd("dbg")))
    a("s_add_u32 %s, %s, 1" % (sCNT, sCNT))
    a("s_waitcnt vmcnt(0)")
    a("v_and_b32 v%d, %d, v%d" % (t3, val | 7, t2))
    a("v_cmp_ne_u32 vcc, %s, v%d" % (sT0, t3))
    a("s_cbranch_vccz %s" % Ld)
    a("s_cmp_lt_u32 %s, 64" % sCNT)
    a("s_cbranch_scc1 %s" % L1)
    a("buffer_wbl2 sc1")
    a("v_lshl_add_u32 v%d, v%d, 7, %s" % (t1, t1, goff_s))
    a("s_waitcnt vmcnt(0)")
    a("s_lshl_b32 %s, %s, 7" % (sT1, me_s))
    a("s_add_u32 %s, %s, %s" % (sT1, sT1, goff_s))
    a("v_mov_b32 v%d, %s" % (t2, sT1))
    a("v_mov_b32 v%d, %s" % (t3, nonce))
    a("s_mov_b64 exec, 1")
    a("buffer_store_dword v%d, v%d, %s, 0 offen sc1" % (t3, t2, srd("ws")))
    a("s_mov_b64 exec, -1")
    a(L2 + ":")
    a("buffer_load_ubyte v%d, v%d, %s, 0 offen sc1" % (t2, t0, srd("dbg")))
    a("buffer_load_dword v%d, v%d, %s, 0 offen sc1" % (t3, t1, srd("ws")))
    a("s_waitcnt vmcnt(0)")
    a("v_and_b32 v%d, %d, v%d" % (t2, val | 7, t2))
    a("v_cmp_ne_u32 vcc, %s, v%d" % (sT0, t2))
    a("v_cmp_ne_u32 s[62:63], %s, v%d" % (nonce, t3))
    a("s_and_b64 vcc, vcc, s[62:63]")
    a("s_cbranch_vccz %s" % Ls)
    a("s_add_u32 %s, %s, 1" % (sCNT, sCNT))
    a("s_cmp_lt_u32 %s, 0x20000" % sCNT)
    a("s_cbranch_scc1 %s" % L2)
    a(Ls + ":")
    a("buffer_inv sc1")
    a("s_waitcnt vmcnt(0)")
    a(Ld + ":")
    a("s_barrier")


def signal_dev(g, off_s, nonce, tag):
    a = g.a
    a("v_mov_b32 v%d, %s" % (g.vT[0], nonce))
    a("v_mov_b32 v%d, %s" % (g.vT[1], off_s))
    a.wait_vm(tag)
    a("s_barrier")
    a("s_mov_b64 exec, %s" % sW0M)
    a("buffer_store_dword v%d, v%d, %s, 0 offen sc1" % (g.vT[0], g.vT[1], srd("ws")))
    a("s_mov_b64 exec, -1")


def wait_dev(g, n, off_s, shift, nonce):
    a = g.a
    Ld, L1 = a.label("wd_done"), a.label("wd_loop")
    t0, t1 = g.vT[:2]
    a("s_cmp_lg_u32 %s, 0" % sW)
    a("s_cbranch_scc1 %s" % Ld)
    a("v_min_u32 v%d, %d, v%d" % (t0, n - 1, g.vLANE))
    a("v_lshl_add_u32 v%d, v%d, %d, %s" % (t0, t0, shift, off_s))
    a("s_mov_b32 %s, 0" % sCNT)
    a(L1 + ":")
    a("buffer_load_dword v%d, v%d, %s, 0 offen sc1" % (t1, t0, srd("ws")))
    a("s_add_u32 %s, %s, 1" % (sCNT, sCNT))
    a("s_waitcnt vmcnt(0)")
    a("v_cmp_ne_u32 vcc, %s, v%d" % (nonce, t1))
    a("s_cbranch_vccz %s" % Ld)
    a("s_cmp_lt_u32 %s, 0x20000" % sCNT)
    a("s_cbranch_scc1 %s" % L1)
    a(Ld + ":")
    a("s_barrier")


def q_linear(g, lds_base, glob_s, per_wave, tag):
    g.q.append(I("s_add_u32 m0, %s, %d" % (sW10, lds_base)))
    g.q.append(I("s_add_u32 %s, %s, %s" % (sOFF, sW10, glob_s)))
    for i in range(per_wave):
        g.q.append(VM("buffer_load_dwordx4 v%d, %s, %s offen sc1 lds" % (g.vL16, srd("ws"), sOFF), (tag, i)))
        if i + 1 < per_wave:
            g.q.append(I("s_add_u32 m0, m0, 4096"))
            g.q.append(I("s_add_u32 %s, %s, 4096" % (sOFF, sOFF)))


def q_w12(g, name, t0_s, n, lds0, tag):
    if isinstance(t0_s, int):
        g.q.append(I("s_add_u32 m0, %s, %d" % (sW10, lds0 + 4096 * t0_s)))
        g.q.append(I("s_mov_b32 %s, %d" % (sOFF, 36864 * t0_s)))
    else:
        g.q.append(I("s_lshl_b32 %s, %s, 12" % (sM0, t0_s)))
        g.q.append(I("s_add_u32 %s, %s, %s" % (sM0, sM0, sW10)))
        g.q.append(I("s_add_u32 m0, %s, %d" % (sM0, lds0)))
        g.q.append(I("s_mul_i32 %s, %s, 36864" % (sOFF, t0_s)))
    for t in range(n):
        g.q.append(VM("buffer_load_dwordx4 v%d, %s, %s offen%s lds" % (g.vW12, srd(name), sOFF, g.nt(name)), tag))
        if t < n - 1:
            g.q.append(I("s_add_u32 m0, m0, 4096"))
            g.q.append(I("s_add_u32 %s, %s, 36864" % (sOFF, sOFF)))


def tr12(g, t, addr):
    bases = [(LA2, g.vTR12), (LB, g.vTR12 + 1), (LB + 36864, g.vTR12 + 2)]
    b, v = [x for x in bases if x[0] <= addr][-1]
    return [LD("ds_read_b64_tr_b16 %s, v%d offset:%d" % (vr(g.vWF + 4 * t, 2), v, addr - b), ("tr12", t)),
            LD("ds_read_b64_tr_b16 %s, v%d offset:%d" % (vr(g.vWF + 4 * t + 2, 2), v, addr - b + 512), ("tr12", t))]


def addr_wbig(g):
    a = g.a
    t0, t1, t2, t3 = g.vT[:4]
    a("s_and_b32 %s, %s, 1" % (sT0, sW))
    a("s_lshl_b32 %s, %s, 2" % (sT0, sT0))
    a("s_lshr_b32 %s, %s, 1" % (sT1, sW))
    a("s_lshl_b32 %s, %s, 5" % (sT1, sT1))
    a("s_add_u32 %s, %s, %s" % (sT0, sT0, sT1))
    a("s_mul_i32 %s, %s, 288" % (sT2, sQ))
    a("s_mul_i32 %s, %s, 1152" % (sT1, sK))
    a("s_add_u32 %s, %s, %s" % (sT1, sT1, sT2))
    a("s_mul_i32 %s, %s, 9216" % (sU0, sT0))
    a("s_add_u32 %s, %s, %s" % (sU0, sU0, sT1))
    a("s_mul_i32 %s, %s, %d" % (sT1, sK, 576 * 1152))
    a("s_add_u32 %s, %s, %s" % (sT1, sT1, sT2))
    a("s_mul_i32 %s, %s, 1152" % (sU1, sT0))
    a("s_add_u32 %s, %s, %s" % (sU1, sU1, sT1))
    for i in range(5):
        u0 = 0 if i == 0 else 32 + 64 * (i - 1)
        a("v_add_u32 v%d, %d, v%d" % (t0, u0, g.vLANE))
        a("v_mul_u32_u24 v%d, 3641, v%d" % (t1, t0))
        a("v_lshrrev_b32 v%d, 16, v%d" % (t1, t1))
        a("v_mul_u32_u24 v%d, 18, v%d" % (t2, t1))
        a("v_sub_u32 v%d, v%d, v%d" % (t0, g.vLANE, t2))
        a("v_lshlrev_b32 v%d, 4, v%d" % (t0, t0))
        a("v_lshrrev_b32 v%d, 2, v%d" % (t2, t1))
        a("v_and_b32 v%d, 3, v%d" % (t1, t1))
        a("v_lshl_add_u32 v%d, v%d, 3, v%d" % (t1, t2, t1))
        a("v_mul_u32_u24 v%d, 1152, v%d" % (t1, t1))
        a("v_lshl_add_u32 v%d, v%d, 3, v%d" % (t2, t1, t0))
        a("v_add_u32 v%d, %s, v%d" % (g.vWB + i, sU0, t2))
        a("v_add3_u32 v%d, %s, v%d, v%d" % (g.vWB + 5 + i, sU1, t1, t0))


def q_stage(g, name, s, slot):
    stride = 9216 if name == "w3" else 1152
    vb = g.vWB if name == "w3" else g.vWB + 5
    g.slot_of[(name, s)] = slot
    g.q.append(I("s_add_u32 m0, %s, %d" % (sWB, slot * SLOT)))
    g.q.append(I("s_mov_b32 %s, %d" % (sOFF, s * 64 * stride)))
    g.q.append(I("s_mov_b32 exec_hi, 0")
               + VM("buffer_load_dwordx4 v%d, %s, %s offen%s lds" % (vb, srd(name), sOFF, g.nt(name)), (name, s))
               + I("s_mov_b32 exec_hi, -1"))
    for i in range(1, 5):
        g.q.append(VM("buffer_load_dwordx4 v%d, %s, %s offen offset:%d%s lds"
                      % (vb + i, srd(name), sOFF, 512 + 1024 * (i - 1), g.nt(name)), (name, s)))


def q_tr(g, name, s):
    slot = g.slot_of[(name, s)]
    hi = slot // 3
    for kk in range(2):
        t = 2 * s + kk
        off = (slot % 3) * SLOT + kk * 9216
        for c in range(3):
            base = g.vTRB + hi if c < 2 else g.vTRB + 3 + hi
            o = off + (32 if c == 1 else 0)
            r = 12 * t + 4 * c
            g.q2.append(LD("ds_read_b64_tr_b16 %s, v%d offset:%d" % (ar(r, 2), base, o), ("trb", s)))
            g.q2.append(LD("ds_read_b64_tr_b16 %s, v%d offset:%d" % (ar(r + 2, 2), base, o + 4608), ("trb", s)))


def colsum(g, s):
    a = g.a
    for t in (2 * s, 2 * s + 1):
        for c in range(3):
            d = vr(g.vCS + 4 * c, 4)
            a("v_mfma_f32_16x16x32_bf16 %s, %s, %s, %s" % (d, ar(12 * t + 4 * c, 4), vr(g.vONES, 4), d if t else "0"))


def take(g, name, stages):
    a = g.a
    assert not g.q
    a.wait_vm([(name, s) for s in stages])
    a("s_barrier")
    for s in stages:
        q_tr(g, name, s)
    g.fill()


def gemm_big(g, acc, tag, chunks):
    a = g.a
    xf = g.vXF
    NB = 3

    def gate(t):
        if t in chunks:
            nxt = [c for c in chunks if c > t]
            last = (nxt[0] if nxt else 18) - 1
            while not any(x == (tag, last) for x in a.vm) and g.q and any(
                    k == "vm" and tg == (tag, last) for f in g.q for k, _, tg in f):
                g.burst(1)
            a.wait_vm((tag, last))
            a("s_barrier")

    def rd(t, i):
        base = g.vXA + i if t < 16 else g.vXA + 4 + i
        a.lds("ds_read_b128 %s, v%d offset:%d" % (vr(xf + 16 * (t % NB) + 4 * i, 4), base, (t & 15) * 4096), ("xf", t))
    gate(0)
    g.stamp()
    for t in (0, 1):
        for i in range(4):
            rd(t, i)
    for t in range(18):
        x = xf + 16 * (t % NB)
        w = 12 * t
        seq = []
        for i in range(4):
            for c in range(2):
                seq.append((vr(acc + 16 * c + 4 * i, 4), ar(w + 4 * c, 4), vr(x + 4 * i, 4)))
            if i == 0:
                seq.append((vr(acc + 32, 4), ar(w + 8, 4), vr(x, 4)))
        a.wait_lg(("xf", t))
        for n, (d, A, B) in enumerate(seq):
            a("v_mfma_f32_16x16x32_bf16 %s, %s, %s, %s" % (d, A, B, d if t else "0"))
            if t + 2 < 18 and n == 0:
                gate(t + 2)
            if t + 2 < 18 and n < 4:
                rd(t + 2, n)
                g.fill(1, 16)
            elif n < 8:
                g.fill(2, 16)
            else:
                g.fill(1, 16)


def build(opts, probe=None):
    g = G(opts)
    a = g.a
    g.nv = 1
    g.slot_of = {}
    g.vLANE = g.v()
    g.vL16 = g.v()
    g.vSTAMP = g.v()
    g.vK0 = g.v(2, 2)
    g.vT = [g.v() for _ in range(12)]
    g.vEP = g.v(2)
    g.vW12 = g.v()
    g.vTR12 = g.v(3)
    g.vXD = g.v()
    g.vXR = g.v(2)
    g.vWB = g.v(10)
    g.vTRB = g.v(6)
    g.vXA = g.v(8)
    g.vRA = g.v(2)
    g.vOA = g.v(2)
    g.vSA = g.v(4)
    g.vRES = g.v(4, 2)
    g.vONES = g.v(4, 4)
    g.vXF = g.v(48, 4)
    g.vACC = g.v(36, 4)
    g.vCS = g.v(12, 4)
    g.vAB = g.v(8, 4)
    g.vWF = g.v(72, 4)
    g.vTMP = g.vWF
    T = g.vT
    L = g.vLANE
    acc, cs = g.vACC, g.vCS
    Lend = "L_end"

    a("s_cmp_ge_u32 s2, 256")
    a("s_cbranch_scc1 %s" % Lend)
    if g.stamps:
        a("s_memrealtime s[64:65]")
    for i, n in enumerate(["x", "w1", "w2", "w3", "w4", "out", "dbg", "ws"]):
        a("s_load_dwordx2 s[%d:%d], s[0:1], %d" % (SRD[n], SRD[n] + 1, 8 * i))
    a("v_lshrrev_b32 v%d, 6, v0" % T[0])
    a("v_and_b32 v%d, 63, v0" % L)
    a("v_readfirstlane_b32 %s, v%d" % (sW, T[0]))
    for n in SRD:
        a("s_mov_b32 s%d, %d" % (SRD[n] + 2, SIZES[n]))
        a("s_mov_b32 s%d, 0x20000" % (SRD[n] + 3))
    if "teamshift" in opts:
        a("s_lshr_b32 %s, s2, 5" % sK)
        a("s_and_b32 %s, s2, 31" % sJ)
    else:
        a("s_and_b32 %s, s2, 7" % sK)
        a("s_lshr_b32 %s, s2, 3" % sJ)
    a("s_lshl_b32 %s, %s, 10" % (sW10, sW))
    a("v_lshlrev_b32 v%d, 4, v%d" % (g.vL16, L))
    if g.stamps:
        a("v_mov_b32 v%d, 0" % g.vSTAMP)
    Lhelp, Lmlp = "L_help", "L_mlp"
    a("s_cmp_ge_u32 %s, 18" % sJ)
    a("s_cbranch_scc1 %s" % Lhelp)

    def common_setup():
        a("s_lshl_b32 %s, %s, 3" % (sWG, sJ))
        a("s_add_u32 %s, %s, %s" % (sWG, sWG, sK))
        a("s_lshr_b32 %s, %s, 2" % (sM, sJ))
        a("s_and_b32 %s, %s, 3" % (sQ, sJ))
        a("s_getreg_b32 %s, hwreg(HW_REG_XCC_ID)" % sXCC)
        a("s_and_b32 %s, %s, 7" % (sXCC, sXCC))
        a("s_cmp_eq_u32 %s, 0" % sW)
        a("s_cselect_b32 s74, 1, 0")
        a("s_mov_b32 s75, 0")
        a("s_mul_i32 %s, %s, 4608" % (sWB, sW))
        a("s_mov_b32 s72, %s" % f2h(-K1))
        a("s_mov_b32 s73, %s" % f2h(-K1))
        a("v_mov_b32 v%d, %s" % (g.vK0, f2h(-K0)))
        a("v_mov_b32 v%d, %s" % (g.vK0 + 1, f2h(-K0)))
        for i in range(4):
            a("v_mov_b32 v%d, 0x3f803f80" % (g.vONES + i))

    def epoch_load():
        a("s_lshl_b32 %s, %s, %d" % (sT0, sM, FLS))
        a("s_lshl_b32 %s, %s, %d" % (sT1, sK, FLS))
        a("v_mov_b32 v%d, %s" % (T[0], sT0))
        a("v_mov_b32 v%d, %s" % (T[1], sT1))
        a.vmem("buffer_load_dword v%d, v%d, %s, 0 offen sc1" % (g.vEP, T[0], srd("ws")), "ep")
        a.vmem("buffer_load_dword v%d, v%d, %s, 0 offen sc1" % (g.vEP + 1, T[1], srd("ws")), "ep")

    def epochs():
        a.wait_vm("ep")
        a("v_readfirstlane_b32 %s, v%d" % (sNM, g.vEP))
        a("v_readfirstlane_b32 %s, v%d" % (sNK, g.vEP + 1))
        a("s_add_u32 %s, %s, 1" % (sNM, sNM))
        a("s_add_u32 %s, %s, 1" % (sNK, sNK))

    def mlp_setup():
        a("v_lshrrev_b32 v%d, 2, v%d" % (T[0], L))
        a("v_mul_u32_u24 v%d, 288, v%d" % (T[0], T[0]))
        a("v_and_b32 v%d, 3, v%d" % (T[1], L))
        a("v_lshl_add_u32 v%d, v%d, 3, v%d" % (T[0], T[1], T[0]))
        a("s_lshl_b32 %s, %s, 6" % (sT0, sW))
        a("v_add_u32 v%d, %s, v%d" % (g.vTRB, sT0, T[0]))
        a("v_add_u32 v%d, 256, v%d" % (g.vTRB + 3, T[0]))
        for i in (1, 2):
            a("v_add_u32 v%d, %d, v%d" % (g.vTRB + i, 3 * SLOT * i, g.vTRB))
            a("v_add_u32 v%d, %d, v%d" % (g.vTRB + 3 + i, 3 * SLOT * i, g.vTRB + 3))
        a("v_and_b32 v%d, 15, v%d" % (T[2], L))
        a("v_lshlrev_b32 v%d, 3, v%d" % (T[2], T[2]))
        for i in range(4):
            a("s_add_u32 %s, %s, %d" % (sT0, sW, i))
            a("s_and_b32 %s, %s, 3" % (sT0, sT0))
            a("s_lshl_b32 %s, %s, 10" % (sT1, sT0))
            a("v_add_u32 v%d, %s, v%d" % (g.vXA + i, sT1, g.vL16))
            a("v_add_u32 v%d, 0x10000, v%d" % (g.vXA + 4 + i, g.vXA + i))
            a("s_lshl_b32 %s, %s, 7" % (sT1, sT0))
            a("s_add_u32 %s, %s, %d" % (sT1, sT1, LST))
            a("v_add_u32 v%d, %s, v%d" % (g.vSA + i, sT1, T[2]))
        addr_wbig(g)
        a("s_lshl_b32 %s, %s, 3" % (sH2A, sK))
        a("s_add_u32 %s, %s, %s" % (sH2A, sH2A, sM))
        a("s_mul_i32 %s, %s, 73728" % (sH2A, sH2A))
        a("s_add_u32 %s, %s, %d" % (sH2A, sH2A, H2A))
        a("s_mul_i32 %s, %s, 144" % (sT0, sQ))
        a("s_lshl_b32 %s, %s, 5" % (sT1, sW))
        a("s_add_u32 %s, %s, %s" % (sT1, sT1, sT0))
        a("s_add_u32 %s, %s, 128" % (sT0, sT0))
        a("s_lshr_b32 %s, %s, 1" % (sT2, sK))
        a("s_lshl_b32 %s, %s, 10" % (sT2, sT2))
        a("s_and_b32 %s, %s, 1" % (sU0, sK))
        a("s_lshl_b32 %s, %s, 7" % (sU0, sU0))
        a("s_add_u32 %s, %s, %s" % (sT2, sT2, sU0))
        a("v_and_b32 v%d, 7, v%d" % (T[3], L))
        for i, (s0, bits) in enumerate(((sT1, 2), (sT0, 1))):
            a("v_bfe_u32 v%d, v%d, 3, %d" % (T[0], L, bits))
            a("v_lshl_add_u32 v%d, v%d, 3, %s" % (T[0], T[0], s0))
            a("v_mul_u32_u24 v%d, 1152, v%d" % (T[1], T[3]))
            a("v_lshl_add_u32 v%d, v%d, 1, v%d" % (g.vOA + i, T[0], T[1]))
            a("v_lshrrev_b32 v%d, 5, v%d" % (T[1], T[0]))
            a("v_lshlrev_b32 v%d, 12, v%d" % (T[1], T[1]))
            a("v_bfe_u32 v%d, v%d, 3, 2" % (T[0], T[0]))
            a("v_lshl_add_u32 v%d, v%d, 8, v%d" % (T[1], T[0], T[1]))
            a("v_lshl_add_u32 v%d, v%d, 4, v%d" % (T[1], T[3], T[1]))
            a("v_add_u32 v%d, %s, v%d" % (g.vRA + i, sT2, T[1]))

    NOWN = g.opt("nown", 5)
    a("s_cmp_ge_u32 %s, 9" % sJ)
    a("s_cselect_b32 %s, 1, 0" % sBL)
    a("s_mul_i32 %s, %s, 9" % (sU0, sBL))
    a("s_sub_u32 %s, %s, %s" % (sCB, sJ, sU0))
    a("s_mul_i32 %s, %s, %d" % (sU0, sBL, NOWN))
    a("s_lshl_b32 %s, %s, 1" % (sT0, sK))
    a("s_add_u32 %s, %s, %s" % (sT0, sT0, sBL))
    a("s_mul_i32 %s, %s, 36864" % (sT3, sT0))
    a("s_lshl_b32 %s, %s, 3" % (sT1, sW))
    a("v_lshrrev_b32 v%d, 3, v%d" % (T[0], L))
    a("v_add_u32 v%d, %s, v%d" % (T[0], sT1, T[0]))
    a("v_bfe_u32 v%d, v%d, 1, 3" % (T[1], T[0]))
    a("v_and_b32 v%d, 7, v%d" % (T[2], L))
    a("v_xor_b32 v%d, v%d, v%d" % (T[1], T[1], T[2]))
    a("v_mul_u32_u24 v%d, 1152, v%d" % (T[3], T[0]))
    a("v_lshl_add_u32 v%d, v%d, 4, v%d" % (g.vXD, T[1], T[3]))
    a("s_and_b32 %s, %s, 1" % (sT1, sW))
    a("s_lshl_b32 %s, %s, 2" % (sT1, sT1))
    a("v_lshrrev_b32 v%d, 3, v%d" % (T[1], L))
    a("v_and_b32 v%d, 2, v%d" % (T[1], T[1]))
    a("v_or_b32 v%d, %s, v%d" % (T[1], sT1, T[1]))
    a("v_xor_b32 v%d, v%d, v%d" % (T[1], T[1], T[2]))
    a("v_lshl_add_u32 v%d, v%d, 4, v%d" % (T[1], T[1], T[3]))
    a("s_lshl_b32 %s, %s, 7" % (sT1, sCB))
    a("v_add_u32 v%d, %s, v%d" % (g.vW12, sT1, T[1]))
    a("s_lshl_b32 %s, %s, 12" % (sT0, sCB))
    a("s_add_u32 m0, %s, %s" % (sT0, sW10))
    a("s_add_u32 %s, %s, %s" % (sT2, sT1, sT3))
    a("s_waitcnt lgkmcnt(0)")
    g.stamp(0)
    a.vmem("buffer_load_dwordx4 v%d, %s, %s offen%s lds" % (g.vXD, srd("x"), sT2, g.nt("x")), "x")
    q_w12(g, "w1", sU0, NOWN, LB, "w1")
    g.fill()
    common_setup()
    epoch_load()
    a("v_lshrrev_b32 v%d, 4, v%d" % (T[0], L))
    a("v_bfe_u32 v%d, v%d, 2, 2" % (T[1], L))
    a("v_lshl_add_u32 v%d, v%d, 3, v%d" % (T[0], T[0], T[1]))
    a("v_bfe_u32 v%d, v%d, 3, 2" % (T[1], L))
    a("v_xor_b32 v%d, %s, v%d" % (T[1], sW, T[1]))
    a("v_lshlrev_b32 v%d, 5, v%d" % (T[1], T[1]))
    a("v_lshl_add_u32 v%d, v%d, 7, v%d" % (T[0], T[0], T[1]))
    a("v_and_b32 v%d, 3, v%d" % (T[1], L))
    a("v_lshl_add_u32 v%d, v%d, 3, v%d" % (T[0], T[1], T[0]))
    a("v_add_u32 v%d, %d, v%d" % (g.vTR12, LA2, T[0]))
    a("v_add_u32 v%d, %d, v%d" % (g.vTR12 + 1, LB, T[0]))
    a("v_add_u32 v%d, %d, v%d" % (g.vTR12 + 2, LB + 36864, T[0]))
    a("v_and_b32 v%d, 15, v%d" % (T[0], L))
    a("v_bfe_u32 v%d, v%d, 1, 3" % (T[1], L))
    a("v_lshrrev_b32 v%d, 4, v%d" % (T[2], L))
    a("v_xor_b32 v%d, v%d, v%d" % (T[1], T[1], T[2]))
    a("v_lshlrev_b32 v%d, 4, v%d" % (T[1], T[1]))
    a("v_lshl_add_u32 v%d, v%d, 7, v%d" % (g.vXR, T[0], T[1]))
    a("v_xor_b32 v%d, 64, v%d" % (g.vXR + 1, g.vXR))
    a("s_sub_u32 %s, %d, %s" % (sST[0], NOWN, sU0))
    mlp_setup()
    a("s_lshl_b32 %s, %s, 2" % (sT0, sCB))
    a("s_add_u32 %s, %s, %s" % (sT0, sT0, sW))
    a("s_mov_b32 %s, 1" % sT1)
    a("s_cmp_ge_u32 %s, 9" % sT0)
    a("s_cselect_b32 %s, -1, %s" % (sT1, sT1))
    a("s_cmp_ge_u32 %s, 18" % sT0)
    a("s_cselect_b32 %s, 2, %s" % (sT1, sT1))
    a("s_cmp_ge_u32 %s, 27" % sT0)
    a("s_cselect_b32 %s, -2, %s" % (sT1, sT1))
    a("v_and_b32 v%d, 31, v%d" % (T[0], L))
    a("v_add_u32 v%d, %s, v%d" % (T[0], sT1, T[0]))
    a("v_cmp_gt_u32 s[76:77], 32, v%d" % T[0])
    a("v_and_b32 v%d, 15, v%d" % (T[1], T[0]))
    a("v_bfe_u32 v%d, v%d, 4, 1" % (T[0], T[0]))
    a("v_lshlrev_b32 v%d, 10, v%d" % (T[0], T[0]))
    a("v_lshl_add_u32 v%d, v%d, 4, v%d" % (T[0], T[1], T[0]))
    a("v_lshrrev_b32 v%d, 5, v%d" % (T[1], L))
    a("v_lshl_add_u32 v%d, v%d, 8, v%d" % (T[9], T[1], T[0]))
    a("v_and_b32 v%d, 15, v%d" % (T[2], L))
    a("v_bfe_u32 v%d, v%d, 4, 1" % (T[0], L))
    a("v_lshlrev_b32 v%d, 10, v%d" % (T[0], T[0]))
    a("v_lshl_add_u32 v%d, v%d, 4, v%d" % (T[0], T[2], T[0]))
    a("v_lshl_add_u32 v%d, v%d, 8, v%d" % (T[10], T[1], T[0]))
    a("s_lshr_b32 %s, %s, 1" % (sT1, sT0))
    a("s_and_b32 %s, %s, 1" % (sT2, sT0))
    a("s_lshl_b32 %s, %s, 9" % (sT2, sT2))
    a("s_lshl_b32 %s, %s, 11" % (sHSO, sT1))
    a("s_add_u32 %s, %s, %s" % (sHSO, sHSO, sT2))
    a("s_add_u32 %s, %s, %s" % (sHSO, sHSO, sT3))
    a("s_add_u32 %s, %s, %d" % (sHSO, sHSO, HS))
    a("s_lshl_b32 %s, %s, 12" % (sX1O, sT1))
    a("s_add_u32 %s, %s, %s" % (sX1O, sX1O, sT2))
    a("s_lshl_b32 %s, %s, 11" % (sT2, sBL))
    a("s_add_u32 %s, %s, %s" % (sX1O, sX1O, sT2))
    a("s_mul_i32 %s, %s, 73728" % (sT2, sK))
    a("s_add_u32 %s, %s, %s" % (sX1O, sX1O, sT2))
    a("s_add_u32 %s, %s, %d" % (sX1O, sX1O, X1))
    a("v_and_b32 v%d, 15, v%d" % (T[4], L))
    a("v_bfe_u32 v%d, v%d, 1, 3" % (T[5], L))
    a("v_lshrrev_b32 v%d, 5, v%d" % (T[6], L))
    a("s_lshl_b32 %s, %s, 1" % (sT0, sW))
    a("v_add_u32 v%d, %s, v%d" % (T[6], sT0, T[6]))
    a("v_xor_b32 v%d, v%d, v%d" % (T[5], T[5], T[6]))
    a("v_lshlrev_b32 v%d, 4, v%d" % (T[5], T[5]))
    a("v_lshl_add_u32 v%d, v%d, 7, v%d" % (T[4], T[4], T[5]))
    a("v_bfe_u32 v%d, v%d, 4, 1" % (T[5], L))
    a("v_lshl_add_u32 v%d, v%d, 3, v%d" % (T[4], T[5], T[4]))
    a("s_lshl_b32 %s, %s, 12" % (sT0, sCB))
    a("v_add_u32 v%d, %s, v%d" % (T[11], sT0, T[4]))
    a("s_mov_b32 m0, %s" % sW10)
    for kb in range(9):
        a.vmem("buffer_load_dwordx4 v%d, %s, %s offen offset:%d%s lds" % (g.vXD, srd("x"), sT3, kb * 128, g.nt("x")), "x")
        if kb < 8:
            a("s_add_u32 m0, m0, %d" % (4096 - 128))
    q_w12(g, "w1", sST[0], NOWN, LB, "w1")
    g.fill()
    q_w12(g, "w1", 2 * NOWN, 18 - 2 * NOWN, LB, "w1")
    a("v_add_u32 v%d, %s, v%d" % (T[0], sW10, g.vL16))
    for i in range(4):
        a("v_mov_b32 v%d, 0" % (T[4 + i]))
    g.stamp(26)
    a.wait_vm("x")
    g.stamp(27)
    for kb in range(9):
        a.lds("ds_read_b128 %s, v%d offset:%d" % (vr(g.vXF + 4 * kb, 4), T[0], LA + kb * 4096), ("st", kb))
    g.fill()
    for kb in range(9):
        a.wait_lg(("st", kb))
        for i in range(4 * kb, 4 * kb + 4):
            a("v_dot2c_f32_bf16 v%d, v%d, v%d" % (T[4 + (i & 1)], g.vXF + i, g.vONES))
            a("v_dot2c_f32_bf16 v%d, v%d, v%d" % (T[6 + (i & 1)], g.vXF + i, g.vXF + i))
    a("v_add_f32 v%d, v%d, v%d" % (g.vAB, T[4], T[5]))
    a("v_add_f32 v%d, v%d, v%d" % (g.vAB + 1, T[6], T[7]))
    for mod in ("quad_perm:[1,0,3,2]", "quad_perm:[2,3,0,1]", "row_half_mirror"):
        a("v_add_f32_dpp v%d, v%d, v%d %s row_mask:0xf bank_mask:0xf" % (g.vAB, g.vAB, g.vAB, mod))
        a("v_add_f32_dpp v%d, v%d, v%d %s row_mask:0xf bank_mask:0xf" % (g.vAB + 1, g.vAB + 1, g.vAB + 1, mod))
    ln_scalars(g, g.vAB, g.vAB + 1, T[6])
    a("v_and_b32 v%d, 0x38, v%d" % (T[0], L))
    a("s_lshl_b32 %s, %s, 6" % (sT0, sW))
    a("s_add_u32 %s, %s, %d" % (sT0, sT0, LST))
    a("v_add_u32 v%d, %s, v%d" % (T[0], sT0, T[0]))
    a.lds("ds_write_b64 v%d, %s" % (T[0], vr(g.vAB, 2)), "stw")
    a("v_and_b32 v%d, 15, v%d" % (T[0], L))
    a("v_lshlrev_b32 v%d, 3, v%d" % (T[0], T[0]))
    a("v_add_u32 v%d, %d, v%d" % (T[0], LST, T[0]))
    epochs()
    g.stamp(28)
    a.wait_vm("w1")
    a.wait_lg()
    a("s_barrier")
    g.stamp(1)

    def gemm_small(xaddr, waddr, withcs, pace):
        AH = 4

        def rd(t):
            if waddr(t) is not None:
                for f in tr12(g, t, waddr(t)):
                    a.lds(f[0][1], ("xs", t))
            for mt in range(2):
                base, off = xaddr(t, mt)
                a.lds("ds_read_b128 %s, v%d offset:%d" % (vr(g.vXF + 8 * (t % 6) + 4 * mt, 4), base, off), ("xs", t))
        for t in range(AH):
            rd(t)
        for t in range(18):
            w = vr(g.vWF + 4 * t, 4)
            a.wait_lg(("xs", t))
            for mt in range(2):
                d = vr(acc + 4 * mt, 4)
                a("v_mfma_f32_16x16x32_bf16 %s, %s, %s, %s" % (d, w, vr(g.vXF + 8 * (t % 6) + 4 * mt, 4), d if t else "0"))
                if mt == 0 and t + AH < 18:
                    rd(t + AH)
            if withcs:
                d = vr(cs, 4)
                a("v_mfma_f32_16x16x32_bf16 %s, %s, %s, %s" % (d, w, vr(g.vONES, 4), d if t else "0"))
            g.fill(pace, 48 if withcs else 36)

    q_w12(g, "w2", 0, 9, LA2, "w2")
    g.burst(3)
    for t in range(18):
        g.q2 += tr12(g, t, LB + 4096 * t)
    while g.q2:
        g.fill(4, 32)
    a.lds("ds_read_b64 %s, v%d" % (vr(g.vAB, 2), T[0]), "ab")
    a.lds("ds_read_b64 %s, v%d offset:128" % (vr(g.vAB + 2, 2), T[0]), "ab")
    a.lds("ds_read_b64 %s, v%d offset:%d" % (vr(g.vAB + 4, 2), T[11], LA), "ab")
    a.lds("ds_read_b64 %s, v%d offset:%d" % (vr(g.vAB + 6, 2), T[11], LA + 2048), "ab")
    a.wait_lg(("tr12", 17))
    a("s_barrier")
    q_w12(g, "w2", 9, 9, LB - 9 * 4096, "w2")
    gemm_small(lambda t, mt: (g.vXR + (t & 1), LA + (t >> 1) * 4096 + mt * 2048), lambda t: None, True, 3)
    g.fill()
    g.stamp(24)
    q_stage(g, "w3", 0, 6)
    q_stage(g, "w3", 1, 7)
    for mt in range(2):
        ln_fix(g, acc + 4 * mt, g.vAB + 2 * mt, cs)
    gelu_pk(g, acc, g.vXF, 8, 1)
    P = g.vXF + 8
    for mt in range(2):
        for h in range(2):
            a("v_cvt_pk_bf16_f32 v%d, v%d, v%d" % (P + 2 * mt + h, acc + 4 * mt + 2 * h, acc + 4 * mt + 2 * h + 1))
    a("v_permlane16_swap_b32 v%d, v%d" % (P, P + 2))
    a("v_permlane16_swap_b32 v%d, v%d" % (P + 1, P + 3))
    for i in range(4):
        a("v_cndmask_b32 v%d, 0, v%d, s[76:77]" % (P + i, P + i))
    a.vmem("buffer_store_dwordx4 %s, v%d, %s, %s offen" % (vr(P, 4), T[9], srd("ws"), sHSO), "hs")
    g.stamp(2)
    g.fill()
    a("s_mul_i32 %s, %s, 72" % (sT2, sBL))
    a("s_add_u32 %s, %s, %s" % (sT2, sT2, sK))
    a("s_lshl_b32 %s, %s, %d" % (sU0, sK, FLS))
    a("s_mul_i32 %s, %s, %d" % (sT1, sBL, 9 * 128))
    a("s_add_u32 %s, %s, %s" % (sU0, sU0, sT1))
    a("s_add_u32 %s, %s, %d" % (sU0, sU0, FL + FL_G1))
    a("s_add_u32 %s, %s, %d" % (sU1, sT3, HS))
    a("v_add_u32 v%d, %d, v%d" % (T[8], LA2, g.vL16))
    signal_local(g, 0x10, "hs")
    g.stamp(25)
    for t in range(18):
        g.q2 += tr12(g, t, LA2 + 4096 * t)
    g.fill()
    a.wait_vm([("w3", 1)])
    a.wait_lg()
    g.nstamp = 3
    wait_local(g, 0x10, 9, sT2, sU0, sCB, sNK)
    g.stamp()

    q_linear(g, LA2, sU1, 9, "hsl")
    g.fill()
    a("s_lshl_b32 %s, %s, %d" % (sU0, sK, FLS))
    a("s_lshl_b32 %s, %s, 9" % (sT0, sJ))
    a("s_add_u32 %s, %s, %s" % (sU0, sU0, sT0))
    a("s_add_u32 %s, %s, %d" % (sU0, sU0, FL + FL_F2))
    a("v_and_b32 v%d, 31, v%d" % (T[9], L))
    a("v_lshlrev_b32 v%d, 3, v%d" % (T[9], T[9]))
    a("v_add_u32 v%d, %d, v%d" % (T[9], LPS, T[9]))
    a("s_lshl_b32 %s, %s, 8" % (sT0, sW))
    a("v_add_u32 v%d, %s, v%d" % (T[11], sT0, T[9]))
    q_tr(g, "w3", 0)
    q_tr(g, "w3", 1)
    g.fill()
    q_stage(g, "w3", 2, 4)
    q_stage(g, "w3", 3, 5)
    g.burst(g.opt("p2pre", 5))
    a.wait_lg()
    colsum(g, 0)
    colsum(g, 1)
    a.wait_vm(("hsl", 8))
    a("s_barrier")
    g.stamp()
    gemm_small(lambda t, mt: (T[8], t * 2048 + mt * 1024), lambda t: None, False, 3)
    g.fill()
    for mt in range(2):
        for h in range(2):
            p = P + 2 * mt + h
            x = g.vAB + 4 + 2 * mt + h
            a("v_cvt_pk_bf16_f32 v%d, v%d, v%d" % (p, acc + 4 * mt + 2 * h, acc + 4 * mt + 2 * h + 1))
            a("v_lshlrev_b32 v%d, 16, v%d" % (T[0], p))
            a("v_and_b32 v%d, 0xffff0000, v%d" % (T[1], p))
            a("v_lshlrev_b32 v%d, 16, v%d" % (T[2], x))
            a("v_and_b32 v%d, 0xffff0000, v%d" % (T[3], x))
            a("v_add_f32 v%d, v%d, v%d" % (T[0], T[0], T[2]))
            a("v_add_f32 v%d, v%d, v%d" % (T[1], T[1], T[3]))
            a("v_cvt_pk_bf16_f32 v%d, v%d, v%d" % (p, T[0], T[1]))
    a("v_permlane16_swap_b32 v%d, v%d" % (P, P + 2))
    a("v_permlane16_swap_b32 v%d, v%d" % (P + 1, P + 3))
    a.vmem("buffer_store_dwordx4 %s, v%d, %s, %s offen sc1" % (vr(P, 4), T[10], srd("ws"), sX1O), "x1")
    g.stamp()
    q_stage(g, "w3", 4, 6)
    q_stage(g, "w3", 5, 7)
    g.fill()
    S = g.vAB
    for i in range(4):
        a("v_mov_b32 v%d, 0" % (S + i))
    for i in range(4):
        a("v_dot2c_f32_bf16 v%d, v%d, v%d" % (S, P + i, g.vONES))
        a("v_dot2c_f32_bf16 v%d, v%d, v%d" % (S + 1, P + i, P + i))
    a("v_permlane32_swap_b32 v%d, v%d" % (S, S + 2))
    a("v_permlane32_swap_b32 v%d, v%d" % (S + 1, S + 3))
    a("v_pk_add_f32 %s, %s, %s" % (vr(S, 2), vr(S, 2), vr(S + 2, 2)))
    a("s_mov_b32 exec_hi, 0")
    a.lds("ds_write_b64 v%d, %s" % (T[11], vr(S, 2)), "ps")
    a("s_mov_b32 exec_hi, -1")
    a.wait_lg()
    a.wait_vm("x1")
    a("s_barrier")
    Lf = a.label("f2")
    a("s_cmp_lg_u32 %s, 0" % sW)
    a("s_cbranch_scc1 %s" % Lf)
    for i in range(4):
        a("ds_read_b64 %s, v%d offset:%d" % (vr(g.vXF + 2 * i, 2), T[9], 256 * i))
    a("v_mov_b32 v%d, %s" % (S, sNK))
    a("v_mov_b32 v%d, %s" % (S + 3, sNK))
    a("s_waitcnt lgkmcnt(0)")
    a("v_pk_add_f32 %s, %s, %s" % (vr(g.vXF, 2), vr(g.vXF, 2), vr(g.vXF + 2, 2)))
    a("v_pk_add_f32 %s, %s, %s" % (vr(g.vXF + 4, 2), vr(g.vXF + 4, 2), vr(g.vXF + 6, 2)))
    a("v_add_f32 v%d, v%d, v%d" % (S + 1, g.vXF, g.vXF + 4))
    a("v_add_f32 v%d, v%d, v%d" % (S + 2, g.vXF + 1, g.vXF + 5))
    a("s_mov_b32 exec_hi, 0")
    a("buffer_store_dwordx4 %s, v%d, %s, %s offen sc1" % (vr(S, 4), g.vL16, srd("ws"), sU0))
    a("s_mov_b32 exec_hi, -1")
    a(Lf + ":")

    g.stamp(20)
    q_tr(g, "w3", 2)
    q_tr(g, "w3", 3)
    g.fill()
    for s, slot in ((6, 0), (7, 1), (8, 2)):
        q_stage(g, "w3", s, slot)
    g.fill()
    a.wait_lg()
    g.stamp()
    colsum(g, 2)
    colsum(g, 3)
    take(g, "w3", [4, 5, 6])
    a.wait_lg()
    g.stamp()
    for s in (4, 5, 6):
        colsum(g, s)
    take(g, "w3", [7, 8])
    a.wait_lg()
    for s in (7, 8):
        colsum(g, s)
    a("s_branch %s" % Lmlp)

    a(Lhelp + ":")
    a.vm = []
    a.lg = []
    a("s_sub_u32 %s, %s, 18" % (sT0, sJ))
    a("s_mul_i32 %s, %s, 14" % (sT1, sW))
    a("s_add_u32 %s, %s, %s" % (sST[1], sT0, sT1))
    a("v_lshlrev_b32 v%d, 7, v%d" % (T[8], L))
    a("s_lshl_b32 %s, %s, 13" % (sST[2], sST[1]))
    a("s_add_u32 %s, %s, %d" % (sST[3], sST[2], 56 * 8192))
    a("s_add_u32 %s, %s, %d" % (sT0, sST[2], 2 * NOWN * 36864))
    a("s_waitcnt lgkmcnt(0)")
    g.stamp(0)
    D = g.vXF
    a.vmem("buffer_load_dword v%d, v%d, %s, %s offen%s" % (D, T[8], srd("w1"), sT0, g.nt("w1")), "touch")
    common_setup()
    epoch_load()
    for h in range(2):
        a("s_lshl_b32 %s, %s, 6" % (sT3, sST[1]))
        if h:
            a("s_add_u32 %s, %s, 3584" % (sT3, sT3))
        a("v_add_u32 v%d, %s, v%d" % (T[0], sT3, L))
        a("v_mul_u32_u24 v%d, 7282, v%d" % (T[1], T[0]))
        a("v_lshrrev_b32 v%d, 16, v%d" % (T[1], T[1]))
        a("v_mul_u32_u24 v%d, 9, v%d" % (T[2], T[1]))
        a("v_sub_u32 v%d, v%d, v%d" % (T[0], T[0], T[2]))
        a("v_mul_u32_u24 v%d, 9216, v%d" % (T[1], T[1]))
        a("v_lshl_add_u32 v%d, v%d, 7, v%d" % (T[10 + h], T[0], T[1]))
    mlp_setup()
    a("s_mul_i32 %s, %s, 1152" % (sT3, sK))
    a("s_mul_i32 %s, %s, 73728" % (sU0, sK))
    a("s_add_u32 %s, %s, %s" % (sU0, sU0, sST[2]))
    a("s_add_u32 %s, %s, %d" % (sU0, sU0, HS))
    a("s_cmp_lt_u32 %s, 9" % sST[1])
    a("s_cselect_b32 %s, %s, 0x7fffffff" % (sU0, sU0))
    a("s_mul_i32 %s, %s, %d" % (sHSO, sK, 576 * 1152))
    a("s_add_u32 %s, %s, %s" % (sX1O, sHSO, sST[3]))
    a("s_add_u32 %s, %s, %s" % (sHSO, sHSO, sST[2]))
    a("s_cmp_lt_u32 %s, 25" % sST[1])
    a("s_cselect_b32 %s, %s, 0x7fffffff" % (sX1O, sX1O))
    a("s_mul_i32 %s, %s, %d" % (sST[0], sK, 8 * 73728))
    a("s_add_u32 %s, %s, %d" % (sST[0], sST[0], H2A))
    a("s_add_u32 %s, %s, %s" % (sST[4], sST[0], sST[3]))
    a("s_add_u32 %s, %s, %s" % (sST[0], sST[0], sST[2]))
    a("s_cmp_lt_u32 %s, 16" % sST[1])
    a("s_cselect_b32 %s, %s, 0x7fffffff" % (sST[4], sST[4]))
    if "nohw" not in opts:
        a.wait_vm()
    epochs()
    a.vmem("buffer_load_dword v%d, v%d, %s, %s offen%s" % (D, T[8], srd("w2"), sST[2], g.nt("w2")), "touch")
    a.vmem("buffer_load_dword v%d, v%d, %s, %s offen%s" % (D + 1, T[8], srd("w2"), sST[3], g.nt("w2")), "touch")
    a.vmem("buffer_load_dword v%d, v%d, %s, %s offen" % (D + 2, T[8], srd("ws"), sU0), "touch")
    a.vmem("buffer_load_dword v%d, v%d, %s, %s offen%s" % (D + 3, T[10], srd("w3"), sT3, g.nt("t3")), "touch")
    a.vmem("buffer_load_dword v%d, v%d, %s, %s offen%s" % (D + 4, T[11], srd("w3"), sT3, g.nt("t3")), "touch")
    def touch_w4():
        a.vmem("buffer_load_dword v%d, v%d, %s, %s offen%s" % (D + 5, T[8], srd("w4"), sHSO, g.nt("t4")), "touch")
        a.vmem("buffer_load_dword v%d, v%d, %s, %s offen%s" % (D + 6, T[8], srd("w4"), sX1O, g.nt("t4")), "touch")
        if "hpre" in opts:
            a.vmem("buffer_load_dword v%d, v%d, %s, %s offen%s" % (D + 7, T[8], srd("ws"), sST[0], g.nt("th")), "touch")
            a.vmem("buffer_load_dword v%d, v%d, %s, %s offen%s" % (D + 8, T[8], srd("ws"), sST[4], g.nt("th")), "touch")
    if "w4late" not in opts:
        touch_w4()
    if g.stamps:
        a.wait_vm()
    g.stamp(1)
    for s in range(8):
        q_stage(g, "w3", s, s)
    g.burst(20)
    g.q, rest = [], g.q
    take(g, "w3", [0, 1])
    g.q = rest
    g.fill()
    a.wait_lg()
    colsum(g, 0)
    colsum(g, 1)
    take(g, "w3", [2, 3, 4])
    q_stage(g, "w3", 8, 0)
    g.fill()
    a.wait_lg()
    for s in (2, 3, 4):
        colsum(g, s)
    take(g, "w3", [5, 6])
    a.wait_lg()
    for s in (5, 6):
        colsum(g, s)
    a.wait_vm([("w3", 8)])
    if "w4late" in opts:
        touch_w4()
    take(g, "w3", [7, 8])
    a.wait_lg()
    for s in (7, 8):
        colsum(g, s)
    g.stamp(2)

    a(Lmlp + ":")
    a.vm = []
    a.lg = []
    g.stamp(6)
    a("s_lshl_b32 %s, %s, %d" % (sU0, sM, FLS))
    a("s_lshr_b32 %s, %s, 1" % (sT0, sW))
    a("s_mul_i32 %s, %s, %d" % (sT0, sT0, 9 * 512))
    a("s_and_b32 %s, %s, 1" % (sT1, sW))
    a("s_lshl_b32 %s, %s, 8" % (sT1, sT1))
    a("s_add_u32 %s, %s, %s" % (sU0, sU0, sT0))
    a("s_add_u32 %s, %s, %s" % (sU0, sU0, sT1))
    a("s_add_u32 %s, %s, %d" % (sU0, sU0, FL + FL_F2))
    a("s_mul_i32 %s, %s, 73728" % (sU1, sM))
    a("s_add_u32 %s, %s, %d" % (sU1, sU1, X1))
    a("v_and_b32 v%d, 15, v%d" % (T[1], L))
    a("v_lshlrev_b32 v%d, 4, v%d" % (T[1], T[1]))
    a("v_lshrrev_b32 v%d, 4, v%d" % (T[0], L))
    a("v_lshl_add_u32 v%d, v%d, 9, v%d" % (T[0], T[0], T[1]))
    a("v_add_u32 v%d, 4096, v%d" % (T[1], T[1]))
    a("s_mov_b32 %s, 0" % sCNT)
    R = g.vXF
    Lp, Lpd = a.label("f2poll"), a.label("f2done")
    a(Lp + ":")
    a("buffer_load_dwordx4 %s, v%d, %s, %s offen sc1" % (vr(R, 4), T[0], srd("ws"), sU0))
    a("buffer_load_dwordx4 %s, v%d, %s, %s offen offset:2048 sc1" % (vr(R + 4, 4), T[0], srd("ws"), sU0))
    a("buffer_load_dwordx4 %s, v%d, %s, %s offen sc1" % (vr(R + 8, 4), T[1], srd("ws"), sU0))
    a("s_add_u32 %s, %s, 1" % (sCNT, sCNT))
    a("s_waitcnt vmcnt(0)")
    a("v_xor_b32 v%d, %s, v%d" % (T[2], sNM, R))
    for r in (R + 3, R + 4, R + 7, R + 8, R + 11):
        a("v_xor_b32 v%d, %s, v%d" % (T[3], sNM, r))
        a("v_or_b32 v%d, v%d, v%d" % (T[2], T[2], T[3]))
    a("v_cmp_ne_u32 vcc, 0, v%d" % T[2])
    a("s_cbranch_vccz %s" % Lpd)
    a("s_cmp_lt_u32 %s, 0x20000" % sCNT)
    a("s_cbranch_scc1 %s" % Lp)
    a(Lpd + ":")
    a("s_barrier")
    g.stamp()
    q_linear(g, LA, sU1, 18, "x1l")
    g.burst(g.opt("x1pre", 8))
    a("s_mul_i32 %s, %s, 18432" % (sT0, sQ))
    a("s_add_u32 %s, %s, %s" % (sT0, sT0, sWB))
    a("s_add_u32 %s, %s, %s" % (sST[0], sT0, sH2A))
    a("v_min_u32 v%d, 35, v%d" % (T[4], L))
    a("v_lshlrev_b32 v%d, 7, v%d" % (T[4], T[4]))
    if "hpre" not in opts:
        g.q.append(VM("buffer_load_dword v%d, v%d, %s, %s offen%s" % (g.vEP, T[4], srd("ws"), sST[0], g.nt("th")), "touch"))
    for s in range(4):
        q_stage(g, "w4", s, 4 + s)
    S = g.vAB
    a("v_add_f32 v%d, v%d, v%d" % (S, R + 1, R + 5))
    a("v_add_f32 v%d, v%d, v%d" % (S + 1, R + 2, R + 6))
    a("v_mov_b32 v%d, v%d" % (S + 2, S))
    a("v_mov_b32 v%d, v%d" % (S + 3, S + 1))
    a("v_permlane32_swap_b32 v%d, v%d" % (S, S + 2))
    a("v_permlane32_swap_b32 v%d, v%d" % (S + 1, S + 3))
    a("v_pk_add_f32 %s, %s, %s" % (vr(S, 2), vr(S, 2), vr(S + 2, 2)))
    a("v_mov_b32 v%d, v%d" % (S + 2, S))
    a("v_mov_b32 v%d, v%d" % (S + 3, S + 1))
    a("v_permlane16_swap_b32 v%d, v%d" % (S, S + 2))
    a("v_permlane16_swap_b32 v%d, v%d" % (S + 1, S + 3))
    a("v_pk_add_f32 %s, %s, %s" % (vr(S, 2), vr(S, 2), vr(S + 2, 2)))
    a("v_add_f32 v%d, v%d, v%d" % (S, S, R + 9))
    a("v_add_f32 v%d, v%d, v%d" % (S + 1, S + 1, R + 10))
    ln_scalars(g, S, S + 1, T[2])
    a.lds("ds_write_b64 v%d, %s" % (g.vSA, vr(S, 2)), "stw")
    a("v_and_b32 v%d, 15, v%d" % (T[0], L))
    a("v_lshlrev_b32 v%d, 4, v%d" % (T[0], T[0]))
    a("v_lshrrev_b32 v%d, 5, v%d" % (T[1], L))
    a("v_lshl_add_u32 v%d, v%d, 8, v%d" % (T[0], T[1], T[0]))
    a("v_bfe_u32 v%d, v%d, 4, 1" % (T[1], L))
    a("v_add_u32 v%d, %s, v%d" % (T[2], sW, T[1]))
    a("v_and_b32 v%d, 3, v%d" % (T[3], T[2]))
    a("v_lshl_add_u32 v%d, v%d, 10, v%d" % (T[5], T[3], T[0]))
    a("v_xor_b32 v%d, 0x800, v%d" % (T[6], T[5]))
    a("v_lshl_add_u32 v%d, v%d, 3, v%d" % (T[7], T[1], T[0]))
    a("v_add_u32 v%d, %s, v%d" % (T[7], sW10, T[7]))
    for c in range(3):
        a("s_mul_i32 %s, %s, 9" % (sT0, sQ))
        if c < 2:
            a("s_lshl_b32 %s, %s, 1" % (sT1, sW))
            a("s_add_u32 %s, %s, %s" % (sT0, sT0, sT1))
            if c:
                a("s_add_u32 %s, %s, 1" % (sT0, sT0))
        else:
            a("s_add_u32 %s, %s, 8" % (sT0, sT0))
        a("s_lshr_b32 %s, %s, 1" % (sT1, sT0))
        a("s_lshl_b32 %s, %s, 12" % (sT1, sT1))
        a("s_and_b32 %s, %s, 1" % (sT0, sT0))
        a("s_lshl_b32 %s, %s, 9" % (sT0, sT0))
        a("s_add_u32 %s, %s, %s" % (sT1, sT1, sT0))
        a("s_add_u32 %s, %s, %s" % (sST[1 + c], sT1, sH2A))
    a.wait_lg()
    gemm_big(g, acc, "x1l", [0, 3, 8, 13])
    g.fill()
    for i in range(4):
        a.lds("ds_read_b64 %s, v%d" % (vr(g.vAB + 2 * i, 2), g.vSA + i), "ab")
    a.lds("ds_read_b128 %s, v%d" % (vr(g.vWF + 64, 4), g.vRA), "ab")
    a.lds("ds_read_b128 %s, v%d" % (vr(g.vWF + 68, 4), g.vRA + 1), "ab")
    g.stamp()
    a.wait_lg()
    a.wait_vm([("w4", 3)])
    a("s_barrier")
    for s in range(4, 8):
        q_stage(g, "w4", s, s - 4)
    g.burst(5)
    for s in range(4):
        q_tr(g, "w4", s)
    P = g.vTMP
    for c in range(3):
        for p in range(2 if c < 2 else 1):
            n = 8 if c < 2 else 4
            y = acc + 16 * c + 8 * p
            for i in range(n // 4):
                ln_fix(g, y + 4 * i, g.vAB + 2 * (2 * p + i), cs + 4 * c)
            gelu_pk(g, y, g.vXF, n, 1)
            b = P + 8 * c + 4 * p
            for i in range(n // 2):
                a("v_cvt_pk_bf16_f32 v%d, v%d, v%d" % (b + i, y + 2 * i, y + 2 * i + 1))
            if c < 2:
                a("v_permlane16_swap_b32 v%d, v%d" % (b, b + 2))
                a("v_permlane16_swap_b32 v%d, v%d" % (b + 1, b + 3))
                a.vmem("buffer_store_dwordx4 %s, v%d, %s, %s offen" % (vr(b, 4), T[5 + p], srd("ws"), sST[1 + c]), "h2a")
            else:
                g.fill()
                a.vmem("buffer_store_dwordx2 %s, v%d, %s, %s offen" % (vr(b, 2), T[7], srd("ws"), sST[3]), "h2a")
    g.stamp()
    a("s_lshl_b32 %s, %s, 5" % (sT2, sM))
    a("s_add_u32 %s, %s, %s" % (sT2, sT2, sK))
    a("s_lshl_b32 %s, %s, %d" % (sU0, sM, FLS))
    a("s_lshl_b32 %s, %s, 9" % (sT1, sK))
    a("s_add_u32 %s, %s, %s" % (sU0, sU0, sT1))
    a("s_add_u32 %s, %s, %d" % (sU0, sU0, FL + FL_G3))
    a.wait_lg()
    signal_local(g, 0x30, "h2a")

    q_stage(g, "w4", 8, 4)
    for s in range(4, 8):
        q_tr(g, "w4", s)
    g.fill()
    a.wait_lg()
    g.stamp()
    wait_local(g, 0x20, 4, sT2, sU0, sQ, sNM)
    g.stamp()
    q_linear(g, LA, sH2A, 18, "h2l")
    g.burst(g.opt("h2pre", 8))
    q_tr(g, "w4", 8)
    a("v_and_b32 v%d, 7, v%d" % (T[0], L))
    a("v_lshrrev_b32 v%d, 5, v%d" % (T[1], L))
    a("v_lshl_add_u32 v%d, v%d, 3, v%d" % (T[0], T[1], T[0]))
    a("v_lshlrev_b32 v%d, 4, v%d" % (T[0], T[0]))
    a("v_bfe_u32 v%d, v%d, 3, 1" % (T[1], L))
    a("v_mul_u32_u24 v%d, 18432, v%d" % (T[1], T[1]))
    a("v_add_u32 v%d, v%d, v%d" % (T[0], T[0], T[1]))
    a("v_bfe_u32 v%d, v%d, 4, 1" % (T[1], L))
    a("v_add_u32 v%d, %s, v%d" % (T[2], sW, T[1]))
    a("v_and_b32 v%d, 3, v%d" % (T[3], T[2]))
    a("v_mul_u32_u24 v%d, 36864, v%d" % (T[4], T[3]))
    a("v_add_u32 v%d, v%d, v%d" % (T[5], T[0], T[4]))
    a("v_xor_b32 v%d, 2, v%d" % (T[3], T[3]))
    a("v_mul_u32_u24 v%d, 36864, v%d" % (T[4], T[3]))
    a("v_add_u32 v%d, v%d, v%d" % (T[6], T[0], T[4]))
    a("v_lshl_add_u32 v%d, v%d, 3, v%d" % (T[7], T[1], T[0]))
    a("s_mul_i32 %s, %s, %d" % (sT3, sJ, 64 * 2304))
    a("s_add_u32 %s, %s, %d" % (sT3, sT3, PART))
    a("s_mul_i32 %s, %s, 2304" % (sT2, sK))
    a("s_add_u32 %s, %s, %s" % (sT2, sT2, sT3))
    a("s_lshl_b32 %s, %s, 9" % (sT0, sW))
    a("s_add_u32 %s, %s, %s" % (sST[0], sT2, sT0))
    a("s_mul_i32 %s, %s, 36864" % (sT0, sW))
    a("s_add_u32 %s, %s, %s" % (sST[1], sT2, sT0))
    a("s_add_u32 %s, %s, 2048" % (sST[1], sST[1]))
    a("s_lshl_b32 %s, %s, %d" % (sU1, sM, FLS))
    a("s_lshl_b32 %s, %s, 10" % (sT0, sQ))
    a("s_add_u32 %s, %s, %s" % (sU1, sU1, sT0))
    a("s_add_u32 %s, %s, %d" % (sU1, sU1, FL + FL_F4))
    a("s_lshl_b32 %s, %s, 7" % (sT0, sK))
    a("s_add_u32 %s, %s, %s" % (sU0, sU1, sT0))
    gemm_big(g, acc, "h2l", [0, 3, 8, 13])
    g.fill()
    g.stamp()
    for c in range(3):
        for p in range(2 if c < 2 else 1):
            n = 8 if c < 2 else 4
            y = acc + 16 * c + 8 * p
            b = P + 8 * c + 4 * p
            for i in range(n // 2):
                a("v_cvt_pk_bf16_f32 v%d, v%d, v%d" % (b + i, y + 2 * i, y + 2 * i + 1))
            if c < 2:
                a("v_permlane16_swap_b32 v%d, v%d" % (b, b + 2))
                a("v_permlane16_swap_b32 v%d, v%d" % (b + 1, b + 3))
                a.vmem("buffer_store_dwordx4 %s, v%d, %s, %s offen offset:%d sc1"
                       % (vr(b, 4), T[5 + p], srd("ws"), sST[0], 256 * c), "part")
            else:
                a.vmem("buffer_store_dwordx2 %s, v%d, %s, %s offen sc1" % (vr(b, 2), T[7], srd("ws"), sST[1]), "part")
    signal_dev(g, sU0, sNM, "part")
    g.stamp()
    a("s_mul_i32 %s, %s, 18432" % (sT2, sK))
    a("s_add_u32 %s, %s, %s" % (sT2, sT2, sT3))
    a("v_and_b32 v%d, 31, v%d" % (T[8], L))
    a("v_lshlrev_b32 v%d, 4, v%d" % (T[8], T[8]))
    a("v_lshrrev_b32 v%d, 5, v%d" % (T[4], L))
    a("v_mul_u32_u24 v%d, %d, v%d" % (T[4], 4 * 2304, T[4]))
    a("v_add_u32 v%d, v%d, v%d" % (T[8], T[8], T[4]))
    a("v_and_b32 v%d, 15, v%d" % (T[9], L))
    a("v_lshlrev_b32 v%d, 4, v%d" % (T[9], T[9]))
    a("v_lshrrev_b32 v%d, 4, v%d" % (T[4], L))
    a("v_mul_u32_u24 v%d, %d, v%d" % (T[4], 2 * 2304, T[4]))
    a("v_add_u32 v%d, v%d, v%d" % (T[9], T[9], T[4]))
    a("s_lshl_b32 %s, %s, 9" % (sT0, sW))
    a("s_add_u32 %s, %s, %s" % (sST[0], sT2, sT0))
    a("s_add_u32 %s, %s, 4608" % (sST[1], sST[0]))
    a("s_add_u32 %s, %s, 2048" % (sST[2], sT2))
    a("s_lshl_b32 %s, %s, 3" % (sT3, sM))
    a("s_add_u32 %s, %s, %s" % (sT3, sT3, sK))
    a("s_mul_i32 %s, %s, %d" % (sT3, sT3, 8 * 1152))
    wait_dev(g, 8, sU1, 7, sNM)
    g.stamp()

    a.vm = []
    X = g.vXF
    for s in range(4):
        a("buffer_load_dwordx4 %s, v%d, %s, %s offen offset:%d sc1"
          % (vr(X + 4 * s, 4), T[8], srd("ws"), sST[s >> 1], 2304 * (s & 1)))

    def unpack_sum(src, n, F):
        for s in range(n):
            for i in range(4):
                lo, hi = (F + 2 * i, F + 2 * i + 1) if s == 0 else (F + 8 + 2 * i, F + 9 + 2 * i)
                a("v_lshlrev_b32 v%d, 16, v%d" % (lo, src + 4 * s + i))
                a("v_and_b32 v%d, 0xffff0000, v%d" % (hi, src + 4 * s + i))
            if s:
                for i in range(4):
                    a("v_pk_add_f32 %s, %s, %s" % (vr(F + 2 * i, 2), vr(F + 2 * i, 2), vr(F + 8 + 2 * i, 2)))

    def xlane(F, ops):
        for op in ops:
            for i in range(8):
                a("v_mov_b32 v%d, v%d" % (F + 8 + i, F + i))
            for i in range(8):
                a("%s v%d, v%d" % (op, F + i, F + 8 + i))
            for i in range(4):
                a("v_pk_add_f32 %s, %s, %s" % (vr(F + 2 * i, 2), vr(F + 2 * i, 2), vr(F + 8 + 2 * i, 2)))

    def fin(F, res, dst):
        for h in range(4):
            a("v_cvt_pk_bf16_f32 v%d, v%d, v%d" % (dst + h, F + 2 * h, F + 2 * h + 1))
        for h in range(4):
            a("v_lshlrev_b32 v%d, 16, v%d" % (F + 2 * h, dst + h))
            a("v_and_b32 v%d, 0xffff0000, v%d" % (F + 2 * h + 1, dst + h))
            a("v_lshlrev_b32 v%d, 16, v%d" % (F + 8 + 2 * h, res + h))
            a("v_and_b32 v%d, 0xffff0000, v%d" % (F + 9 + 2 * h, res + h))
        for h in range(4):
            a("v_pk_add_f32 %s, %s, %s" % (vr(F + 2 * h, 2), vr(F + 2 * h, 2), vr(F + 8 + 2 * h, 2)))
        for h in range(4):
            a("v_cvt_pk_bf16_f32 v%d, v%d, v%d" % (dst + h, F + 2 * h, F + 2 * h + 1))

    Lx, Ly = a.label("fin"), a.label("fin")
    a("s_cmp_lg_u32 %s, 3" % sW)
    a("s_cbranch_scc1 %s" % Lx)
    for s in range(2):
        a("buffer_load_dwordx4 %s, v%d, %s, %s offen offset:%d sc1" % (vr(X + 16 + 4 * s, 4), T[9], srd("ws"), sST[2], 2304 * s))
    a("s_waitcnt vmcnt(0)")
    unpack_sum(X + 16, 2, acc)
    xlane(acc, ["v_permlane32_swap_b32", "v_permlane16_swap_b32"])
    fin(acc, g.vWF + 68, g.vAB + 4)
    a("s_mov_b64 exec, 0xffff")
    a("buffer_store_dwordx4 %s, v%d, %s, %s offen" % (vr(g.vAB + 4, 4), g.vOA + 1, srd("out"), sT3))
    a("s_mov_b64 exec, -1")
    a("s_branch %s" % Ly)
    a(Lx + ":")
    a("s_waitcnt vmcnt(0)")
    a(Ly + ":")
    unpack_sum(X, 4, acc)
    xlane(acc, ["v_permlane32_swap_b32"])
    fin(acc, g.vWF + 64, g.vAB)
    a("s_mov_b32 exec_hi, 0")
    a("buffer_store_dwordx4 %s, v%d, %s, %s offen" % (vr(g.vAB, 4), g.vOA, srd("out"), sT3))
    Lz = a.label("fin")
    a("s_or_b32 %s, %s, %s" % (sT0, sK, sQ))
    a("s_or_b32 %s, %s, %s" % (sT0, sT0, sW))
    a("s_cmp_lg_u32 %s, 0" % sT0)
    a("s_cbranch_scc1 %s" % Lz)
    a("s_lshl_b32 %s, %s, %d" % (sT0, sM, FLS))
    a("v_mov_b32 v%d, %s" % (T[0], sT0))
    a("v_mov_b32 v%d, %s" % (T[1], sNM))
    a("s_mov_b64 exec, 1")
    a("buffer_store_dword v%d, v%d, %s, 0 offen sc1" % (T[1], T[0], srd("ws")))
    a(Lz + ":")
    if g.stamps:
        a("s_mov_b64 exec, -1")
        g.stamp()
        a("s_waitcnt vmcnt(0)")
        g.stamp()
        a("v_writelane_b32 v%d, s64, 63" % g.vSTAMP)
        a("s_cmp_lg_u32 %s, 0" % sW)
        a("s_cbranch_scc1 %s" % Lend)
        a("s_lshl_b32 %s, s2, 8" % sT0)
        a("s_add_u32 %s, %s, %d" % (sT0, sT0, STAMP))
        a("v_lshlrev_b32 v%d, 2, v%d" % (T[0], L))
        a("buffer_store_dword v%d, v%d, %s, %s offen" % (g.vSTAMP, T[0], srd("ws"), sT0))
        if probe:
            a("s_cmp_lg_u32 s2, %d" % probe[0])
            a("s_cbranch_scc1 %s" % Lend)
            a("v_readlane_b32 %s, v%d, %d" % (sT1, g.vSTAMP, probe[1]))
            a("s_sub_u32 %s, %s, s64" % (sT1, sT1))
            a("s_mul_i32 %s, %s, %d" % (sT1, sT1, probe[2]))
            a("s_add_u32 %s, %s, 10000" % (sT1, sT1))
            a("s_min_u32 %s, %s, 200000" % (sT1, sT1))
            a("L_probe:")
            a("s_memrealtime s[60:61]")
            a("s_waitcnt lgkmcnt(0)")
            a("s_sub_u32 %s, s60, s64" % sT2)
            a("s_cmp_lt_u32 %s, %s" % (sT2, sT1))
            a("s_cbranch_scc1 L_probe")
    a(Lend + ":")
    a("s_endpgm")

    body = a.text()
    src = HEADER + "; @launch grid=(256,1,1) block=(256,1,1) lds=%d\n" % LDS_BYTES
    src += '.amdgcn_target "amdgcn-amd-amdhsa--gfx950"\n.text\n.globl %s_kernel\n.p2align 8\n.type %s_kernel,@function\n%s_kernel:\n' % (NAME, NAME, NAME)
    src += body
    src += '''.section .rodata,"a"
.p2align 6
.amdhsa_kernel %s_kernel
  .amdhsa_next_free_vgpr 512
  .amdhsa_next_free_sgpr 90
  .amdhsa_accum_offset 256
  .amdhsa_group_segment_fixed_size 0
  .amdhsa_kernarg_size 64
  .amdhsa_user_sgpr_count 2
  .amdhsa_user_sgpr_kernarg_segment_ptr 1
  .amdhsa_system_sgpr_workgroup_id_x 1
.end_amdhsa_kernel
''' % NAME
    return src


if __name__ == "__main__":
    out = sys.argv[1]
    probe = None
    for o in sys.argv[2:]:
        if o.startswith("probe="):
            probe = tuple(int(x) for x in o[6:].split(","))
    open(out, "w").write(build(set(sys.argv[2:]), probe))
```

```python
import sys, re
NAME = "standalone__mixer_s_mlp__sampling"
src = open(sys.argv[1]).read()
slot, base_off, flags, per_cu = int(sys.argv[3]), int(sys.argv[4], 0), sys.argv[5], int(sys.argv[6])
flags = "" if flags == "-" else " " + flags
m = re.search(r"; @launch (grid=.*)\n", src)
main_line = "; @launch kernel=%s_kernel %s\n" % (NAME, m.group(1))
def kd(n):
    return '''.section .rodata,"a"
.p2align 6
.amdhsa_kernel %s
  .amdhsa_next_free_vgpr 16
  .amdhsa_next_free_sgpr 32
  .amdhsa_accum_offset 16
  .amdhsa_group_segment_fixed_size 0
  .amdhsa_kernarg_size 64
  .amdhsa_user_sgpr_count 2
  .amdhsa_user_sgpr_kernarg_segment_ptr 1
  .amdhsa_system_sgpr_workgroup_id_x 1
.end_amdhsa_kernel
''' % n
def kern(n, body):
    return ".text\n.globl %s\n.p2align 8\n.type %s,@function\n%s:\n%s\n    s_endpgm\n" % (n, n, n, body) + kd(n)
size = {3: 5308416, 4: 5308416, 7: 268435456, 1: 663552}[slot]
mark = kern("mark_kernel", """    s_cmp_ge_u32 s2, 256
    s_cbranch_scc1 L_mark_end
    s_memrealtime s[20:21]
    s_load_dwordx2 s[8:9], s[0:1], 56
    s_load_dwordx2 s[12:13], s[0:1], %d
    s_mov_b32 s10, 0x10000000
    s_mov_b32 s11, 0x20000
    s_mov_b32 s14, %d
    s_mov_b32 s15, 0x20000
    v_min_u32 v3, %d, v0
    v_lshlrev_b32 v3, 7, v3
    s_mul_i32 s16, s2, %d
    s_add_u32 s16, s16, %d
    s_waitcnt lgkmcnt(0)
    s_memrealtime s[4:5]
    s_waitcnt lgkmcnt(0)
    buffer_load_dword v4, v3, s[12:15], s16 offen%s
    s_waitcnt vmcnt(0)
    s_barrier
    s_memrealtime s[6:7]
    s_waitcnt lgkmcnt(0)
    s_cmp_lg_u32 s2, 8
    s_cbranch_scc1 L_mark_end
    s_sub_u32 s6, s6, s4
    v_mov_b32 v4, s20
    v_mov_b32 v5, s6
    v_mov_b32 v2, 0x3000000
    buffer_store_dwordx2 v[4:5], v2, s[8:11], 0 offen
L_mark_end:""" % (slot * 8, size, per_cu // 128 - 1, per_cu, base_off, flags))
spin = kern("spin_kernel", """    s_cmp_lg_u32 s2, 0
    s_cbranch_scc1 L_spin_end
    s_load_dwordx2 s[8:9], s[0:1], 56
    s_mov_b32 s10, 0x10000000
    s_mov_b32 s11, 0x20000
    s_waitcnt lgkmcnt(0)
    v_mov_b32 v2, 0x3000000
    buffer_load_dwordx2 v[4:5], v2, s[8:11], 0 offen sc1
    s_waitcnt vmcnt(0)
    v_readfirstlane_b32 s12, v4
    v_readfirstlane_b32 s15, v5
    s_mov_b32 s14, 0
    s_nop 4
    s_mul_i32 s15, s15, 20
    s_add_u32 s15, s15, 10000
    s_min_u32 s15, s15, 100000
L_spin:
    s_memrealtime s[4:5]
    s_waitcnt lgkmcnt(0)
    s_add_u32 s14, s14, 1
    s_cmp_ge_u32 s14, 0x40000
    s_cbranch_scc1 L_spin_end
    s_sub_u32 s13, s4, s12
    s_cmp_lt_u32 s13, s15
    s_cbranch_scc1 L_spin
L_spin_end:""")
L = lambda n, g=1, b=64: "; @launch kernel=%s grid=(%d,1,1) block=(%d,1,1) lds=0\n" % (n, g, b)
src = src.replace(m.group(0), L("mark_kernel", 256, 256) + main_line + L("spin_kernel")) + mark + spin
open(sys.argv[2], "w").write(src)
```

```python
import sys, struct
from asmlib import Asm

NAME = "standalone__mixer_s_mlp__sampling"
HEADER = open("cdna_kernels/%s.s.ref" % NAME).read().split("; Override")[0]

FL = 0
FL_F0, FL_G1, FL_G3, FL_F2 = 128, 128 * 33, 128 * 51, 16384
FLS = 15
HS = 0x40000
X1 = 0x100000
H2A = 0x200000
PART = 0x800000
STAMP = 0x2000000
LA, LB, LST = 0, 73728, 147456
LA2 = LA + 36864
LPS = LST + 512
LDS_BYTES = 163840
SLOT = 18432

SRD = dict(x=8, w1=12, w2=16, w3=20, w4=24, out=28, dbg=32, ws=36)
SIZES = dict(x=589824, w1=663552, w2=663552, w3=5308416, w4=5308416, out=589824, dbg=256, ws=268435456)
srd = lambda n: "s[%d:%d]" % (SRD[n], SRD[n] + 3)
sK, sJ, sM, sQ, sW, sBL, sCB, sXCC, sNM, sNK = ["s%d" % i for i in range(40, 50)]
sT0, sT1, sT2, sT3, sOFF, sCNT, sM0, sWG, sU0, sU1 = ["s%d" % i for i in range(50, 60)]
sSTAMP = "s[60:61]"
sW10, sWB, sH2A, sBAT, sW3B, sW4B = ["s%d" % i for i in range(66, 72)]
sC1 = "s[72:73]"
sW0M, sW1M = "s[74:75]", "s[88:89]"
sSHM = "s[76:77]"
sHSO, sX1O = "s78", "s79"
sST = ["s80", "s81", "s82", "s83", "s84"]
sPART, sINB, sF0 = "s85", "s86", "s87"
K0 = 2.0 * 0.7978845608028654 * 1.4426950408889634
K1 = K0 * 0.044715
MFMA = "v_mfma_f32_16x16x32_bf16"


def f2h(x):
    return "0x%08x" % struct.unpack("<I", struct.pack("<f", x))[0]


def vr(b, n):
    return "v[%d:%d]" % (b, b + n - 1) if n > 1 else "v%d" % b


def ar(b, n):
    return "a[%d:%d]" % (b, b + n - 1) if n > 1 else "a%d" % b


I = lambda text: [("i", text, None)]
VM = lambda text, tag: [("vm", text, tag)]
LD = lambda text, tag: [("lds", text, tag)]


class G:
    def __init__(self, opts):
        self.a = Asm()
        self.o = opts
        self.stamps = "stamps" in opts
        self.nv = 1
        self.q = []
        self.q2 = []
        self.q3 = []
        self.clk = 0
        self.gap = self.opt("gap", 64)
        self.slot_of = {}
        self.maxlds = 1
        self.fines = []
        for o in opts:
            if o.startswith('fine='):
                self.fines = o[5:].split(',')

    def v(self, n=1, align=1):
        self.nv = (self.nv + align - 1) // align * align
        r = self.nv
        self.nv += n
        assert self.nv <= 256, self.nv
        return r

    def stamp(self, i):
        if not self.stamps:
            return
        a = self.a
        a("s_memrealtime %s" % sSTAMP)
        a("s_waitcnt lgkmcnt(0)")
        a.lg = []
        a("v_writelane_b32 v%d, s60, %d" % (self.vSTAMP, i))

    def fine(self, key):
        if key in self.fines:
            i = self.fines.index(key)
            self.a("%s s[%d:%d]" % ("s_memtime" if "finecyc" in self.o else "s_memrealtime", 90 + 2 * i, 91 + 2 * i))

    def opt(self, name, default):
        for o in self.o:
            if o.startswith(name + "="):
                return int(o[len(name) + 1:])
        return default

    def emit(self, f):
        for kind, text, tag in f:
            if kind == "vm":
                self.a.vmem(text, tag)
                self.clk = 0
            elif kind == "lds":
                self.a.lds(text, tag)
            else:
                self.a(text)
        return len(f)

    def fill_vm(self, n, cyc):
        self.clk += cyc
        k = 0
        while k < n and self.q and (self.clk >= self.gap or not any(x[0] == "vm" for x in self.q[0])):
            k += self.emit(self.q.pop(0))
        return k

    def fill_lds(self, n):
        k = 0
        while k < n and self.q2:
            k += self.emit(self.q2.pop(0))
        return k

    def fill_alu(self, n):
        k = 0
        while k < n and self.q3:
            self.a(self.q3.pop(0))
            k += 1
        return k

    def mgap(self, ds=(), n=2, cyc=16):
        self.clk += cyc
        is_s = lambda f: len(f) == 1 and f[0][0] == "i"
        ready = lambda: self.q and (is_s(self.q[0]) or self.clk >= self.gap)
        if not ds and n == 2 and ready() and len(self.q[0]) == 3:
            self.emit(self.q.pop(0))
            return
        if self.q and is_s(self.q[0]):
            self.emit(self.q.pop(0))
        elif self.q3 and self.q3[0].startswith("s_"):
            self.fill_alu(1)
        for f in ds:
            f()
            n -= 1
        lds_used = len(ds)
        while n > 0:
            if ready() and len(self.q[0]) == 1:
                self.emit(self.q.pop(0))
            elif self.q2 and lds_used < self.maxlds:
                self.fill_lds(1)
                lds_used += 1
            elif self.q3:
                self.fill_alu(1)
                lds_used = 9
            else:
                break
            n -= 1

    def burst(self, nvm=10 ** 6):
        while nvm > 0 and self.q:
            f = self.q.pop(0)
            nvm -= sum(x[0] == "vm" for x in f)
            self.emit(f)

    def flush(self):
        self.burst()
        self.fill_lds(10 ** 6)
        self.fill_alu(10 ** 6)

    def capture(self, fn):
        keep, self.a.lines = self.a.lines, []
        fn()
        got, self.a.lines = [l.strip() for l in self.a.lines], keep
        return got

    def weave(self, lines):
        for l in lines:
            self.a(l)
            if not l.startswith("s_cmp"):
                self.fill_vm(3, 4)


def gelu_pk(g, y, t, n):
    a = g.a
    prs = [(y + i, t + i) for i in range(0, n, 2)]
    for r, u in prs:
        a("v_pk_mul_f32 %s, %s, %s" % (vr(u, 2), vr(r, 2), vr(r, 2)))
    for r, u in prs:
        a("v_pk_fma_f32 %s, %s, %s, %s" % (vr(u, 2), vr(u, 2), sC1, vr(g.vK0, 2)))
    for r, u in prs:
        a("v_pk_mul_f32 %s, %s, %s" % (vr(u, 2), vr(u, 2), vr(r, 2)))
    for i in range(n):
        a("v_exp_f32 v%d, v%d" % (t + i, t + i))
    for r, u in prs:
        a("v_pk_add_f32 %s, %s, 1.0 op_sel_hi:[1,0]" % (vr(u, 2), vr(u, 2)))
    for i in range(n):
        a("v_rcp_f32 v%d, v%d" % (t + i, t + i))
    for r, u in prs:
        a("v_pk_mul_f32 %s, %s, %s" % (vr(r, 2), vr(r, 2), vr(u, 2)))


def ln_fix(g, y, ab, cs):
    a = g.a
    for h in (0, 2):
        a("v_pk_mul_f32 %s, %s, %s op_sel_hi:[1,0]" % (vr(y + h, 2), vr(y + h, 2), vr(ab, 2)))
    for h in (0, 2):
        a("v_pk_fma_f32 %s, %s, %s, %s op_sel:[0,1,0]" % (vr(y + h, 2), vr(cs + h, 2), vr(ab, 2), vr(y + h, 2)))


def ln_scalars(g, s, q, t):
    a = g.a
    a("v_mul_f32 v%d, %s, v%d" % (s, f2h(1.0 / 576), s))
    a("v_mul_f32 v%d, %s, v%d" % (q, f2h(1.0 / 576), q))
    a("v_fma_f32 v%d, -v%d, v%d, v%d" % (q, s, s, q))
    a("v_max_f32 v%d, 0, v%d" % (q, q))
    a("v_cvt_pk_bf16_f32 v%d, v%d, v%d" % (t, s, q))
    a("v_lshlrev_b32 v%d, 16, v%d" % (s, t))
    a("v_and_b32 v%d, 0xffff0000, v%d" % (q, t))
    a("v_add_f32 v%d, %s, v%d" % (q, f2h(1e-5), q))
    a("v_cvt_pk_bf16_f32 v%d, v%d, v%d" % (t, q, q))
    a("v_lshlrev_b32 v%d, 16, v%d" % (q, t))
    a("v_sqrt_f32 v%d, v%d" % (q, q))
    a("v_cvt_pk_bf16_f32 v%d, v%d, v%d" % (t, q, q))
    a("v_lshlrev_b32 v%d, 16, v%d" % (q, t))
    a("v_rcp_f32 v%d, v%d" % (t, q))
    a("v_mul_f32 v%d, -v%d, v%d" % (q, s, t))
    a("v_mov_b32 v%d, v%d" % (s, t))


def signal_local(g, val, tag):
    a = g.a
    a("s_or_b32 %s, %s, %d" % (sT0, sXCC, val))
    a("v_mov_b32 v%d, %s" % (g.vT[0], sT0))
    a("v_mov_b32 v%d, %s" % (g.vT[1], sWG))
    a.wait_vm(tag)
    a("s_barrier")
    a("s_mov_b64 exec, %s" % sW0M)
    a("buffer_store_byte v%d, v%d, %s, 0 offen" % (g.vT[0], g.vT[1], srd("dbg")))
    a("s_mov_b64 exec, -1")


def wait_local(g, val, n, first_s, goff_s, me_s, nonce):
    a = g.a
    Ld, L1, Ls = a.label("wl_done"), a.label("wl_fast"), a.label("wl_slow")
    t0, t1, t2, t3 = g.vT[:4]
    a("s_cmp_lg_u32 %s, 0" % sW)
    a("s_cbranch_scc1 %s" % Ld)
    a("v_min_u32 v%d, %d, v%d" % (t1, n - 1, g.vLANE))
    a("v_lshl_add_u32 v%d, v%d, 3, %s" % (t0, t1, first_s))
    a("s_or_b32 %s, %s, %d" % (sT0, sXCC, val))
    a("s_mov_b32 %s, 0" % sCNT)
    a(L1 + ":")
    a("s_cmp_ge_u32 %s, 64" % sCNT)
    a("s_cbranch_scc1 %s" % Ls)
    a("buffer_load_ubyte v%d, v%d, %s, 0 offen sc1" % (t2, t0, srd("dbg")))
    a("s_add_u32 %s, %s, 1" % (sCNT, sCNT))
    a("s_waitcnt vmcnt(0)")
    a("v_and_b32 v%d, %d, v%d" % (t3, val | 7, t2))
    a("v_cmp_ne_u32 vcc, %s, v%d" % (sT0, t3))
    a("s_cbranch_vccnz %s" % L1)
    a(Ld + ":")
    a("s_barrier")

    def slow():
        L2, L3 = a.label("wl_poll"), a.label("wl_pub")
        a(Ls + ":")
        a("buffer_wbl2 sc1")
        a("v_lshl_add_u32 v%d, v%d, 7, %s" % (t1, t1, goff_s))
        a("s_waitcnt vmcnt(0)")
        a("s_lshl_b32 %s, %s, 7" % (sT1, me_s))
        a("s_add_u32 %s, %s, %s" % (sT1, sT1, goff_s))
        a("v_mov_b32 v%d, %s" % (t2, sT1))
        a("v_mov_b32 v%d, %s" % (t3, nonce))
        a("s_mov_b64 exec, 1")
        a("buffer_store_dword v%d, v%d, %s, 0 offen sc1" % (t3, t2, srd("ws")))
        a("s_mov_b64 exec, -1")
        a(L2 + ":")
        a("buffer_load_ubyte v%d, v%d, %s, 0 offen sc1" % (t2, t0, srd("dbg")))
        a("buffer_load_dword v%d, v%d, %s, 0 offen sc1" % (t3, t1, srd("ws")))
        a("s_waitcnt vmcnt(0)")
        a("v_and_b32 v%d, %d, v%d" % (t2, val | 7, t2))
        a("v_cmp_ne_u32 vcc, %s, v%d" % (sT0, t2))
        a("v_cmp_ne_u32 s[62:63], %s, v%d" % (nonce, t3))
        a("s_and_b64 vcc, vcc, s[62:63]")
        a("s_cbranch_vccz %s" % L3)
        a("s_add_u32 %s, %s, 1" % (sCNT, sCNT))
        a("s_cmp_lt_u32 %s, 0x20000" % sCNT)
        a("s_cbranch_scc1 %s" % L2)
        a(L3 + ":")
        a("buffer_inv sc1")
        a("s_waitcnt vmcnt(0)")
        a("s_branch %s" % Ld)
    g.slow.append(slow)


def q_linear(g, lds_base, glob_s, per_wave, tag):
    g.q.append(I("s_add_u32 m0, %s, %d" % (sW10, lds_base)))
    g.q.append(I("s_add_u32 %s, %s, %s" % (sOFF, sW10, glob_s)))
    for i in range(per_wave):
        g.q.append(VM("buffer_load_dwordx4 v%d, %s, %s offen sc1 lds" % (g.vL16, srd("ws"), sOFF), (tag, i)))
        if i + 1 < per_wave:
            g.q.append(I("s_add_u32 m0, m0, 4096"))
            g.q.append(I("s_add_u32 %s, %s, 4096" % (sOFF, sOFF)))


def q_w12(g, name, t0_s, n, lds0, tag, fixed=False):
    if isinstance(t0_s, int):
        g.q.append(I("s_add_u32 m0, %s, %d" % (sW10, lds0 + 4096 * t0_s)))
        g.q.append(I("s_mov_b32 %s, %d" % (sOFF, 36864 * t0_s)))
    elif fixed:
        g.q.append(I("s_add_u32 m0, %s, %d" % (sW10, lds0)))
        g.q.append(I("s_mul_i32 %s, %s, 36864" % (sOFF, t0_s)))
    else:
        g.q.append(I("s_lshl_b32 %s, %s, 12" % (sM0, t0_s)))
        g.q.append(I("s_add_u32 %s, %s, %s" % (sM0, sM0, sW10)))
        g.q.append(I("s_add_u32 m0, %s, %d" % (sM0, lds0)))
        g.q.append(I("s_mul_i32 %s, %s, 36864" % (sOFF, t0_s)))
    for t in range(n):
        g.q.append(VM("buffer_load_dwordx4 v%d, %s, %s offen lds" % (g.vW12, srd(name), sOFF), tag))
        if t < n - 1:
            g.q.append(I("s_add_u32 m0, m0, 4096"))
            g.q.append(I("s_add_u32 %s, %s, 36864" % (sOFF, sOFF)))


def tr12(g, t, addr):
    bases = [(LA2, g.vTR12), (LB, g.vTR12 + 1), (LB + 36864, g.vTR12 + 2)]
    b, v = [x for x in bases if x[0] <= addr][-1]
    return [LD("ds_read_b64_tr_b16 %s, v%d offset:%d" % (vr(g.vWF + 4 * t, 2), v, addr - b), ("tr12", t)),
            LD("ds_read_b64_tr_b16 %s, v%d offset:%d" % (vr(g.vWF + 4 * t + 2, 2), v, addr - b + 512), ("tr12", t))]


def q_stage(g, name, s, slot):
    stride, vb, sb = (9216, g.vWB, sW3B) if name == "w3" else (1152, g.vWB + 5, sW4B)
    g.slot_of[(name, s)] = slot
    g.q.append(I("s_add_u32 m0, %s, %d" % (sWB, slot * SLOT)))
    g.q.append(I("s_add_u32 %s, %s, %d" % (sOFF, sb, s * 64 * stride)))
    g.q.append(I("s_mov_b32 exec_hi, 0")
               + VM("buffer_load_dwordx4 v%d, %s, %s offen lds" % (vb, srd(name), sOFF), (name, s))
               + I("s_mov_b32 exec_hi, -1"))
    for i in range(1, 5):
        g.q.append(VM("buffer_load_dwordx4 v%d, %s, %s offen offset:%d lds"
                      % (vb + i, srd(name), sOFF, 512 + 1024 * (i - 1)), (name, s)))


def q_tr(g, name, s):
    slot = g.slot_of[(name, s)]
    hi = slot // 3
    for kk in range(2):
        t = 2 * s + kk
        off = (slot % 3) * SLOT + kk * 9216
        for c in range(3):
            base = g.vTRB + hi if c < 2 else g.vTRB + 3 + hi
            o = off + (32 if c == 1 else 0)
            r = 12 * t + 4 * c
            g.q2.append(LD("ds_read_b64_tr_b16 %s, v%d offset:%d" % (ar(r, 2), base, o), ("trb", t)))
            g.q2.append(LD("ds_read_b64_tr_b16 %s, v%d offset:%d" % (ar(r + 2, 2), base, o + 4608), ("trb", t)))


def colsum(g, stages):
    a = g.a
    for s in stages:
        for t in (2 * s, 2 * s + 1):
            a.wait_lg(("trb", t))
            for c in range(3):
                d = vr(g.vCS + 4 * c, 4)
                a("%s %s, %s, %s, %s" % (MFMA, d, ar(12 * t + 4 * c, 4), vr(g.vONES, 4), d if t else "0"))
                k = g.fill_lds(2)
                if k < 2:
                    g.mgap(n=2 - k)
                else:
                    g.clk += 20


def force_issue(g, tags):
    while any(k == "vm" and tg in tags for f in g.q for k, _, tg in f):
        g.burst(1)


def sync(g, vmt, lgt=None):
    a = g.a
    force_issue(g, vmt)
    if lgt == "all":
        assert not g.q2
        a.wait_lg()
    elif lgt:
        assert not any(tg in lgt for f in g.q2 for _, _, tg in f), lgt
        a.wait_lg(lgt)
    a.wait_vm(vmt)
    a("s_barrier")


def gemm_big(g, acc, gates, need_tr, st):
    a = g.a
    xf = g.vXF
    NB = 3

    def gate(t):
        if t in gates:
            pre, vmt, lgt, post = gates[t]
            if pre:
                pre()
            sync(g, vmt, lgt)
            if post:
                post()

    def rd(t, i):
        base = g.vXA + i if t < 16 else g.vXA + 4 + i
        a.lds("ds_read_b128 %s, v%d offset:%d" % (vr(xf + 16 * (t % NB) + 4 * i, 4), base, (t & 15) * 4096), ("xf", t))
    gate(-1)
    g.stamp(st)
    for t in (0, 1):
        for i in range(4):
            rd(t, i)
    for t in range(18):
        x = xf + 16 * (t % NB)
        w = 12 * t
        seq = []
        for i in range(4):
            for c in range(2):
                seq.append((vr(acc + 16 * c + 4 * i, 4), ar(w + 4 * c, 4), vr(x + 4 * i, 4)))
            if i == 0:
                seq.append((vr(acc + 32, 4), ar(w + 8, 4), vr(x, 4)))
        if need_tr:
            while any(tg == ("trb", t) for f in g.q2 for _, _, tg in f):
                g.fill_lds(1)
            a.wait_lg([("xf", t), ("trb", t)])
        else:
            a.wait_lg(("xf", t))
        for n, (d, A, B) in enumerate(seq):
            a("%s %s, %s, %s, %s" % (MFMA, d, A, B, d if t else "0"))
            if n == 0:
                g.fine("g%d_%d" % (st, t))
                gate(t)
            g.maxlds = 2 if n == 4 else 1
            if t + 2 < 18 and n < 4:
                g.mgap([lambda: rd(t + 2, n)])
            else:
                g.mgap(n=2 if n < 8 else 1)


def build(opts, probe=None):
    g = G(opts)
    a = g.a
    g.slow = []
    g.vLANE = g.v()
    g.vL16 = g.v()
    g.vSTAMP = g.v()
    g.vK0 = g.v(2, 2)
    g.vT = [g.v() for _ in range(12)]
    g.vEP = g.v(2)
    g.vW12 = g.v()
    g.vTR12 = g.v(3)
    g.vXD = g.v()
    g.vXR = g.v(2)
    g.vWB = g.v(10)
    g.vTRB = g.v(6)
    g.vXA = g.v(8)
    g.vRA = g.v(2)
    g.vOA = g.v(2)
    g.vSA = g.v(4)
    g.vONES = g.v(4, 4)
    g.vNEG = g.v(4, 4)
    g.vXF = g.v(48, 4)
    g.vACC = g.v(36, 4)
    g.vCS = g.v(12, 4)
    g.vAB = g.v(8, 4)
    g.vWF = g.v(72, 4)
    T = g.vT
    L = g.vLANE
    acc, cs = g.vACC, g.vCS
    Lend, Lwork, Lhelp, Lmlp = "L_end", "L_work", "L_help", "L_mlp"
    NOWN = g.opt("nown", 5)
    D = g.vXF

    a("s_cmp_ge_u32 s2, 256")
    a("s_cbranch_scc1 %s" % Lend)
    if g.stamps:
        a("s_memrealtime s[64:65]")
    for i, n in enumerate(["x", "w1", "w2", "w3", "w4", "out", "dbg", "ws"]):
        a("s_load_dwordx2 s[%d:%d], s[0:1], %d" % (SRD[n], SRD[n] + 1, 8 * i))
    a("v_lshrrev_b32 v%d, 6, v0" % T[0])
    a("v_and_b32 v%d, 63, v0" % L)
    a("v_readfirstlane_b32 %s, v%d" % (sW, T[0]))
    if "teamshift" in opts:
        a("s_lshr_b32 %s, s2, 5" % sK)
        a("s_and_b32 %s, s2, 31" % sJ)
    else:
        a("s_and_b32 %s, s2, 7" % sK)
        a("s_lshr_b32 %s, s2, 3" % sJ)
    a("s_getpc_b64 s[4:5]")
    a("L_pc:")
    a("s_lshl_b32 %s, %s, 2" % (sT0, sJ))
    a("s_add_u32 %s, %s, %s" % (sT0, sT0, sW))
    a("s_lshl_b32 %s, %s, 8" % (sT0, sT0))
    a("v_lshl_add_u32 v%d, v%d, 7, %s" % (T[0], L, sT0))
    a("v_min_u32 v%d, L_end-L_pc, v%d" % (T[0], T[0]))
    a("s_mov_b64 exec, 3")
    a("global_load_dword v%d, v%d, s[4:5]" % (g.vEP, T[0]))
    a("s_mov_b64 exec, -1")
    for n in ("x", "w1"):
        a("s_mov_b32 s%d, %d" % (SRD[n] + 2, SIZES[n]))
        a("s_mov_b32 s%d, 0x20000" % (SRD[n] + 3))
    a("s_lshl_b32 %s, %s, 10" % (sW10, sW))
    if g.stamps:
        a("v_mov_b32 v%d, 0" % g.vSTAMP)
    a("s_cmp_lt_u32 %s, 18" % sJ)
    a("s_cbranch_scc1 %s" % Lwork)
    a("s_sub_u32 %s, %s, 18" % (sT0, sJ))
    a("s_mul_i32 %s, %s, 14" % (sT1, sW))
    a("s_add_u32 %s, %s, %s" % (sST[1], sT0, sT1))
    a("v_lshlrev_b32 v%d, 7, v%d" % (T[8], L))
    a("s_lshl_b32 %s, %s, 13" % (sST[2], sST[1]))
    a("s_add_u32 %s, %s, %d" % (sT0, sST[2], 2 * NOWN * 36864))
    a("s_waitcnt lgkmcnt(0)")
    a("buffer_load_dword v%d, v%d, %s, %s offen" % (D, T[8], srd("w1"), sT0))
    a("s_branch %s" % Lhelp)

    def common_setup():
        for n in ("ws", "w2", "w3", "w4", "out", "dbg"):
            a("s_mov_b32 s%d, %d" % (SRD[n] + 2, SIZES[n]))
            a("s_mov_b32 s%d, 0x20000" % (SRD[n] + 3))
        a("v_lshlrev_b32 v%d, 4, v%d" % (g.vL16, L))
        a("s_lshr_b32 %s, %s, 2" % (sM, sJ))
        a("s_and_b32 %s, %s, 3" % (sQ, sJ))
        a("s_mul_i32 %s, %s, 4608" % (sWB, sW))
        a("s_lshl_b32 %s, %s, %d" % (sT0, sM, FLS))
        a("s_lshl_b32 %s, %s, %d" % (sT1, sK, FLS))
        a("v_mov_b32 v%d, %s" % (T[0], sT0))
        a("v_mov_b32 v%d, %s" % (T[1], sT1))
        a.vmem("buffer_load_dword v%d, v%d, %s, 0 offen sc1" % (g.vEP, T[0], srd("ws")), "ep")
        a.vmem("buffer_load_dword v%d, v%d, %s, 0 offen sc1" % (g.vEP + 1, T[1], srd("ws")), "ep")
        a("s_mul_i32 %s, %s, %d" % (sPART, sJ, 64 * 2304))
        a("s_add_u32 %s, %s, %d" % (sPART, sPART, PART))
        a("s_mul_i32 %s, %s, 18432" % (sINB, sK))
        a("s_add_u32 %s, %s, %s" % (sINB, sINB, sPART))
        a("s_add_u32 %s, %s, %s" % (sST[4], sINB, sWB))
        for i in range(4):
            a("v_mov_b32 v%d, -1" % (g.vNEG + i))

    def q_clear():
        for off in (0, 1024, 2048, 3072, 3584):
            g.q.append(VM("buffer_store_dwordx4 %s, v%d, %s, %s offen offset:%d sc1"
                          % (vr(g.vNEG, 4), g.vL16, srd("ws"), sST[4], off), "clr"))

    def setup2():
        a("s_lshl_b32 %s, %s, 3" % (sWG, sJ))
        a("s_add_u32 %s, %s, %s" % (sWG, sWG, sK))
        a("s_getreg_b32 %s, hwreg(HW_REG_XCC_ID)" % sXCC)
        a("s_and_b32 %s, %s, 7" % (sXCC, sXCC))
        a("s_cmp_eq_u32 %s, 0" % sW)
        a("s_cselect_b32 s74, 1, 0")
        a("s_mov_b32 s75, 0")
        a("s_cmp_eq_u32 %s, 1" % sW)
        a("s_cselect_b32 s88, 1, 0")
        a("s_mov_b32 s89, 0")
        a("s_mov_b32 s72, %s" % f2h(-K1))
        a("s_mov_b32 s73, %s" % f2h(-K1))
        a("v_mov_b32 v%d, %s" % (g.vK0, f2h(-K0)))
        a("v_mov_b32 v%d, %s" % (g.vK0 + 1, f2h(-K0)))
        for i in range(4):
            a("v_mov_b32 v%d, 0x3f803f80" % (g.vONES + i))
        a("s_lshl_b32 %s, %s, %d" % (sF0, sM, FLS))
        a("s_lshl_b32 %s, %s, 10" % (sT0, sQ))
        a("s_add_u32 %s, %s, %s" % (sF0, sF0, sT0))
        a("s_add_u32 %s, %s, %d" % (sF0, sF0, FL + FL_F0))

    def epochs():
        a.wait_vm("ep")
        a("v_readfirstlane_b32 %s, v%d" % (sNM, g.vEP))
        a("v_readfirstlane_b32 %s, v%d" % (sNK, g.vEP + 1))
        a("s_add_u32 %s, %s, 1" % (sNM, sNM))
        a("s_add_u32 %s, %s, 1" % (sNK, sNK))

    def flag_f0():
        a("s_lshl_b32 %s, %s, 7" % (sT1, sK))
        a("s_add_u32 %s, %s, %s" % (sT1, sT1, sF0))
        a("v_mov_b32 v%d, %s" % (T[2], sNM))
        a("v_mov_b32 v%d, %s" % (T[3], sT1))
        a("s_mov_b64 exec, %s" % sW1M)
        a("buffer_store_dword v%d, v%d, %s, 0 offen sc1" % (T[2], T[3], srd("ws")))
        a("s_mov_b64 exec, -1")

    def wbig_setup():
        t0, t1, t2 = T[:3]
        a("s_and_b32 %s, %s, 1" % (sT0, sW))
        a("s_lshl_b32 %s, %s, 2" % (sT0, sT0))
        a("s_lshr_b32 %s, %s, 1" % (sT1, sW))
        a("s_lshl_b32 %s, %s, 5" % (sT1, sT1))
        a("s_add_u32 %s, %s, %s" % (sT0, sT0, sT1))
        a("s_mul_i32 %s, %s, 288" % (sT2, sQ))
        a("s_mul_i32 %s, %s, 1152" % (sT1, sK))
        a("s_add_u32 %s, %s, %s" % (sT1, sT1, sT2))
        a("s_mul_i32 %s, %s, 9216" % (sW3B, sT0))
        a("s_add_u32 %s, %s, %s" % (sW3B, sW3B, sT1))
        a("s_mul_i32 %s, %s, %d" % (sT1, sK, 576 * 1152))
        a("s_add_u32 %s, %s, %s" % (sT1, sT1, sT2))
        a("s_mul_i32 %s, %s, 1152" % (sW4B, sT0))
        a("s_add_u32 %s, %s, %s" % (sW4B, sW4B, sT1))
        a("s_mov_b32 %s, -288" % sT0)
        a("s_movk_i32 %s, 9216" % sT1)
        a("s_movk_i32 %s, 1152" % sT2)
        a("v_mul_u32_u24 v%d, 3641, v%d" % (t2, L))
        for i in range(5):
            u0 = 0 if i == 0 else 32 + 64 * (i - 1)
            if i:
                a("v_add_u32 v%d, %d, v%d" % (t1, u0 * 3641, t2))
            a("v_lshrrev_b32 v%d, 16, v%d" % (t1, t1 if i else t2))
            a("v_mad_i32_i24 v%d, v%d, %s, v%d" % (t0, t1, sT0, g.vL16))
            a("v_and_b32 v%d, 12, v%d" % (g.vWB + i, t1))
            a("v_add_u32 v%d, v%d, v%d" % (t1, t1, g.vWB + i))
            a("v_mad_u32_u24 v%d, v%d, %s, v%d" % (g.vWB + i, t1, sT1, t0))
            a("v_mad_u32_u24 v%d, v%d, %s, v%d" % (g.vWB + 5 + i, t1, sT2, t0))
        a("v_lshrrev_b32 v%d, 2, v%d" % (t0, L))
        a("v_mul_u32_u24 v%d, 288, v%d" % (t0, t0))
        a("v_and_b32 v%d, 3, v%d" % (t1, L))
        a("v_lshl_add_u32 v%d, v%d, 3, v%d" % (t0, t1, t0))
        a("s_lshl_b32 %s, %s, 6" % (sT0, sW))
        a("v_add_u32 v%d, %s, v%d" % (g.vTRB, sT0, t0))
        a("v_add_u32 v%d, 256, v%d" % (g.vTRB + 3, t0))
        for i in (1, 2):
            a("v_add_u32 v%d, %d, v%d" % (g.vTRB + i, 3 * SLOT * i, g.vTRB))
            a("v_add_u32 v%d, %d, v%d" % (g.vTRB + 3 + i, 3 * SLOT * i, g.vTRB + 3))

    def mlp_setup():
        a("v_and_b32 v%d, 15, v%d" % (T[2], L))
        a("v_lshlrev_b32 v%d, 3, v%d" % (T[2], T[2]))
        for i in range(4):
            a("s_add_u32 %s, %s, %d" % (sT0, sW, i))
            a("s_and_b32 %s, %s, 3" % (sT0, sT0))
            a("s_lshl_b32 %s, %s, 10" % (sT1, sT0))
            a("v_add_u32 v%d, %s, v%d" % (g.vXA + i, sT1, g.vL16))
            a("v_add_u32 v%d, 0x10000, v%d" % (g.vXA + 4 + i, g.vXA + i))
            a("s_lshl_b32 %s, %s, 7" % (sT1, sT0))
            a("s_add_u32 %s, %s, %d" % (sT1, sT1, LST))
            a("v_add_u32 v%d, %s, v%d" % (g.vSA + i, sT1, T[2]))
        a("s_lshl_b32 %s, %s, 3" % (sH2A, sK))
        a("s_add_u32 %s, %s, %s" % (sH2A, sH2A, sM))
        a("s_mul_i32 %s, %s, 73728" % (sH2A, sH2A))
        a("s_add_u32 %s, %s, %d" % (sH2A, sH2A, H2A))
        a("s_mul_i32 %s, %s, 144" % (sT0, sQ))
        a("s_lshl_b32 %s, %s, 5" % (sT1, sW))
        a("s_add_u32 %s, %s, %s" % (sT1, sT1, sT0))
        a("s_add_u32 %s, %s, 128" % (sT0, sT0))
        a("s_lshr_b32 %s, %s, 1" % (sT2, sK))
        a("s_lshl_b32 %s, %s, 10" % (sT2, sT2))
        a("s_and_b32 %s, %s, 1" % (sT3, sK))
        a("s_lshl_b32 %s, %s, 7" % (sT3, sT3))
        a("s_add_u32 %s, %s, %s" % (sT2, sT2, sT3))
        a("v_and_b32 v%d, 7, v%d" % (T[3], L))
        for i, (s0, bits) in enumerate(((sT1, 2), (sT0, 1))):
            a("v_bfe_u32 v%d, v%d, 3, %d" % (T[0], L, bits))
            a("v_lshl_add_u32 v%d, v%d, 3, %s" % (T[0], T[0], s0))
            a("v_mul_u32_u24 v%d, 1152, v%d" % (T[1], T[3]))
            a("v_lshl_add_u32 v%d, v%d, 1, v%d" % (g.vOA + i, T[0], T[1]))
            a("v_lshrrev_b32 v%d, 5, v%d" % (T[1], T[0]))
            a("v_lshlrev_b32 v%d, 12, v%d" % (T[1], T[1]))
            a("v_bfe_u32 v%d, v%d, 3, 2" % (T[0], T[0]))
            a("v_lshl_add_u32 v%d, v%d, 8, v%d" % (T[1], T[0], T[1]))
            a("v_lshl_add_u32 v%d, v%d, 4, v%d" % (T[1], T[3], T[1]))
            a("v_add_u32 v%d, %s, v%d" % (g.vRA + i, sT2, T[1]))

    a(Lwork + ":")
    a("s_cmp_ge_u32 %s, 9" % sJ)
    a("s_cselect_b32 %s, 1, 0" % sBL)
    a("s_mul_i32 %s, %s, 9" % (sST[2], sBL))
    a("s_sub_u32 %s, %s, %s" % (sCB, sJ, sST[2]))
    a("s_mul_i32 %s, %s, %d" % (sST[0], sBL, NOWN))
    a("s_lshl_b32 %s, %s, 1" % (sT0, sK))
    a("s_add_u32 %s, %s, %s" % (sT0, sT0, sBL))
    a("s_mul_i32 %s, %s, 36864" % (sBAT, sT0))
    a("s_lshl_b32 %s, %s, 3" % (sT1, sW))
    a("v_lshrrev_b32 v%d, 3, v%d" % (T[0], L))
    a("v_add_u32 v%d, %s, v%d" % (T[0], sT1, T[0]))
    a("v_bfe_u32 v%d, v%d, 1, 3" % (T[1], T[0]))
    a("v_and_b32 v%d, 7, v%d" % (T[2], L))
    a("v_xor_b32 v%d, v%d, v%d" % (T[1], T[1], T[2]))
    a("v_mul_u32_u24 v%d, 1152, v%d" % (T[3], T[0]))
    a("v_lshl_add_u32 v%d, v%d, 4, v%d" % (g.vXD, T[1], T[3]))
    a("s_and_b32 %s, %s, 1" % (sT1, sW))
    a("s_lshl_b32 %s, %s, 2" % (sT1, sT1))
    a("v_lshrrev_b32 v%d, 3, v%d" % (T[1], L))
    a("v_and_b32 v%d, 2, v%d" % (T[1], T[1]))
    a("v_or_b32 v%d, %s, v%d" % (T[1], sT1, T[1]))
    a("v_xor_b32 v%d, v%d, v%d" % (T[1], T[1], T[2]))
    a("v_lshl_add_u32 v%d, v%d, 4, v%d" % (T[1], T[1], T[3]))
    a("s_lshl_b32 %s, %s, 7" % (sT1, sCB))
    a("v_add_u32 v%d, %s, v%d" % (g.vW12, sT1, T[1]))
    a("s_lshl_b32 %s, %s, 12" % (sT0, sCB))
    a("s_add_u32 m0, %s, %s" % (sT0, sW10))
    a("s_add_u32 %s, %s, %s" % (sT2, sT1, sBAT))
    a("s_waitcnt lgkmcnt(0)")
    g.stamp(0)
    a.vmem("buffer_load_dwordx4 v%d, %s, %s offen lds" % (g.vXD, srd("x"), sT2), "x")
    q_w12(g, "w1", sST[0], NOWN, LB, "w1a")
    g.burst()
    a("s_sub_u32 %s, %d, %s" % (sST[0], NOWN, sST[0]))
    a("s_sub_u32 %s, 9, %s" % (sST[3], sST[2]))
    common_setup()
    g.q.append(I("s_mov_b32 m0, %s" % sW10))
    for kb in range(9):
        g.q.append(VM("buffer_load_dwordx4 v%d, %s, %s offen offset:%d lds" % (g.vXD, srd("x"), sBAT, kb * 128), "x"))
        if kb < 8:
            g.q.append(I("s_add_u32 m0, m0, %d" % (4096 - 128)))
    q_w12(g, "w1", sST[0], NOWN, LB, "w1a")

    def p_setup():
        setup2()
        a("v_lshrrev_b32 v%d, 4, v%d" % (T[0], L))
        a("v_bfe_u32 v%d, v%d, 2, 2" % (T[1], L))
        a("v_lshl_add_u32 v%d, v%d, 3, v%d" % (T[0], T[0], T[1]))
        a("v_bfe_u32 v%d, v%d, 3, 2" % (T[1], L))
        a("v_xor_b32 v%d, %s, v%d" % (T[1], sW, T[1]))
        a("v_lshlrev_b32 v%d, 5, v%d" % (T[1], T[1]))
        a("v_lshl_add_u32 v%d, v%d, 7, v%d" % (T[0], T[0], T[1]))
        a("v_and_b32 v%d, 3, v%d" % (T[1], L))
        a("v_lshl_add_u32 v%d, v%d, 3, v%d" % (T[0], T[1], T[0]))
        a("v_add_u32 v%d, %d, v%d" % (g.vTR12, LA2, T[0]))
        a("v_add_u32 v%d, %d, v%d" % (g.vTR12 + 1, LB, T[0]))
        a("v_add_u32 v%d, %d, v%d" % (g.vTR12 + 2, LB + 36864, T[0]))
        a("v_and_b32 v%d, 15, v%d" % (T[0], L))
        a("v_bfe_u32 v%d, v%d, 1, 3" % (T[1], L))
        a("v_lshrrev_b32 v%d, 4, v%d" % (T[2], L))
        a("v_xor_b32 v%d, v%d, v%d" % (T[1], T[1], T[2]))
        a("v_lshlrev_b32 v%d, 4, v%d" % (T[1], T[1]))
        a("v_lshl_add_u32 v%d, v%d, 7, v%d" % (g.vXR, T[0], T[1]))
        a("v_xor_b32 v%d, 64, v%d" % (g.vXR + 1, g.vXR))
        a("s_lshl_b32 %s, %s, 2" % (sT0, sCB))
        a("s_add_u32 %s, %s, %s" % (sT0, sT0, sW))
        a("s_mov_b32 %s, 1" % sT1)
        a("s_cmp_ge_u32 %s, 9" % sT0)
        a("s_cselect_b32 %s, -1, %s" % (sT1, sT1))
        a("s_cmp_ge_u32 %s, 18" % sT0)
        a("s_cselect_b32 %s, 2, %s" % (sT1, sT1))
        a("s_cmp_ge_u32 %s, 27" % sT0)
        a("s_cselect_b32 %s, -2, %s" % (sT1, sT1))
        a("v_and_b32 v%d, 31, v%d" % (T[0], L))
        a("v_add_u32 v%d, %s, v%d" % (T[0], sT1, T[0]))
        a("v_cmp_gt_u32 %s, 32, v%d" % (sSHM, T[0]))
        a("v_and_b32 v%d, 15, v%d" % (T[1], T[0]))
        a("v_bfe_u32 v%d, v%d, 4, 1" % (T[0], T[0]))
        a("v_lshlrev_b32 v%d, 10, v%d" % (T[0], T[0]))
        a("v_lshl_add_u32 v%d, v%d, 4, v%d" % (T[0], T[1], T[0]))
        a("v_lshrrev_b32 v%d, 5, v%d" % (T[1], L))
        a("v_lshl_add_u32 v%d, v%d, 8, v%d" % (T[9], T[1], T[0]))
        a("v_and_b32 v%d, 15, v%d" % (T[2], L))
        a("v_bfe_u32 v%d, v%d, 4, 1" % (T[0], L))
        a("v_lshlrev_b32 v%d, 10, v%d" % (T[0], T[0]))
        a("v_lshl_add_u32 v%d, v%d, 4, v%d" % (T[0], T[2], T[0]))
        a("v_lshl_add_u32 v%d, v%d, 8, v%d" % (T[10], T[1], T[0]))
        a("s_lshr_b32 %s, %s, 1" % (sT1, sT0))
        a("s_and_b32 %s, %s, 1" % (sT2, sT0))
        a("s_lshl_b32 %s, %s, 9" % (sT2, sT2))
        a("s_add_u32 %s, %s, %s" % (sU0, sST[2], sT1))
        a("s_sub_u32 %s, %s, 18" % (sU1, sU0))
        a("s_cmp_ge_u32 %s, 18" % sU0)
        a("s_cselect_b32 %s, %s, %s" % (sU0, sU1, sU0))
        a("s_lshl_b32 %s, %s, 11" % (sHSO, sU0))
        a("s_add_u32 %s, %s, %s" % (sHSO, sHSO, sT2))
        a("s_add_u32 %s, %s, %s" % (sHSO, sHSO, sBAT))
        a("s_add_u32 %s, %s, %d" % (sHSO, sHSO, HS))
        a("s_lshl_b32 %s, %s, 12" % (sX1O, sT1))
        a("s_add_u32 %s, %s, %s" % (sX1O, sX1O, sT2))
        a("s_lshl_b32 %s, %s, 11" % (sT2, sBL))
        a("s_add_u32 %s, %s, %s" % (sX1O, sX1O, sT2))
        a("s_mul_i32 %s, %s, 73728" % (sT2, sK))
        a("s_add_u32 %s, %s, %s" % (sX1O, sX1O, sT2))
        a("s_add_u32 %s, %s, %d" % (sX1O, sX1O, X1))
        a("v_and_b32 v%d, 15, v%d" % (T[4], L))
        a("v_bfe_u32 v%d, v%d, 1, 3" % (T[5], L))
        a("v_lshrrev_b32 v%d, 5, v%d" % (T[6], L))
        a("s_lshl_b32 %s, %s, 1" % (sT0, sW))
        a("v_add_u32 v%d, %s, v%d" % (T[6], sT0, T[6]))
        a("v_xor_b32 v%d, v%d, v%d" % (T[5], T[5], T[6]))
        a("v_lshlrev_b32 v%d, 4, v%d" % (T[5], T[5]))
        a("v_lshl_add_u32 v%d, v%d, 7, v%d" % (T[4], T[4], T[5]))
        a("v_bfe_u32 v%d, v%d, 4, 1" % (T[5], L))
        a("v_lshl_add_u32 v%d, v%d, 3, v%d" % (T[4], T[5], T[4]))
        a("s_lshl_b32 %s, %s, 12" % (sT0, sCB))
        a("v_add_u32 v%d, %s, v%d" % (T[11], sT0, T[4]))
        wbig_setup()
        a("v_and_b32 v%d, 0x38, v%d" % (T[8], L))
        a("s_lshl_b32 %s, %s, 6" % (sT0, sW))
        a("s_add_u32 %s, %s, %d" % (sT0, sT0, LST))
        a("v_add_u32 v%d, %s, v%d" % (T[8], sT0, T[8]))
        a("v_add_u32 v%d, %s, v%d" % (T[0], sW10, g.vL16))
        for i in range(4):
            a("v_mov_b32 v%d, 0" % (T[4 + i]))
    g.clk = -g.opt("r2wait", 0)
    gap, g.gap = g.gap, g.opt("r2gap", 48)
    g.weave(g.capture(p_setup))
    g.stamp(31)
    g.burst()
    q_w12(g, "w1", 2 * NOWN, 18 - 2 * NOWN, LB, "w1b")
    g.stamp(26)
    a.wait_vm("x")
    g.stamp(27)
    for kb in range(9):
        a.lds("ds_read_b128 %s, v%d offset:%d" % (vr(g.vXF + 4 * kb, 4), T[0], LA + kb * 4096), ("st", kb))
    g.burst(2)
    g.gap = 32
    for kb in range(9):
        a.wait_lg(("st", kb))
        for i in range(4 * kb, 4 * kb + 4):
            a("v_dot2c_f32_bf16 v%d, v%d, v%d" % (T[4 + (i & 1)], g.vXF + i, g.vONES))
            a("v_dot2c_f32_bf16 v%d, v%d, v%d" % (T[6 + (i & 1)], g.vXF + i, g.vXF + i))
        g.fill_vm(3, 32)
    g.burst()
    g.gap = gap
    a("v_and_b32 v%d, 15, v%d" % (T[0], L))
    a("v_lshlrev_b32 v%d, 3, v%d" % (T[0], T[0]))
    a("v_add_u32 v%d, %d, v%d" % (T[0], LST, T[0]))
    a("v_add_f32 v%d, v%d, v%d" % (g.vAB, T[4], T[5]))
    a("v_add_f32 v%d, v%d, v%d" % (g.vAB + 1, T[6], T[7]))
    g.stamp(28)
    sync(g, ["w1a"])
    g.stamp(1)

    def gemm_small(xaddr, waddr, withcs, gates):
        AH = 3

        def rd(t, part):
            if t >= 18:
                return
            if part == 0:
                if t in gates:
                    sync(g, gates[t][0])
                    if gates[t][1]:
                        gates[t][1]()
                if waddr(t) is not None:
                    for f in tr12(g, t, waddr(t)):
                        a.lds(f[0][1], ("xs", t))
                    return
            for mt in ((0, 1) if waddr(t) is not None else (part,)):
                base, off = xaddr(t, mt)
                a.lds("ds_read_b128 %s, v%d offset:%d" % (vr(g.vXF + 8 * (t % 6) + 4 * mt, 4), base, off), ("xs", t))
        for t in range(AH):
            rd(t, 0)
            rd(t, 1)
        for t in range(18):
            w = vr(g.vWF + 4 * t, 4)
            a.wait_lg(("xs", t))
            g.fine("p%d_%d" % (1 if withcs else 2, t))
            for mt in range(2):
                d = vr(acc + 4 * mt, 4)
                a("%s %s, %s, %s, %s" % (MFMA, d, w, vr(g.vXF + 8 * (t % 6) + 4 * mt, 4), d if t else "0"))
                if t + AH >= 18:
                    g.mgap(n=2 if withcs or mt == 0 else 1)
                elif withcs:
                    g.mgap([lambda: rd(t + AH, mt)], n=1, cyc=20)
                else:
                    g.mgap([lambda: rd(t + AH, mt)], n=2 - mt)
            if withcs:
                d = vr(cs, 4)
                a("%s %s, %s, %s, %s" % (MFMA, d, w, vr(g.vONES, 4), d if t else "0"))
                g.mgap(n=2)

    def chain():
        for mod in ("quad_perm:[1,0,3,2]", "quad_perm:[2,3,0,1]", "row_half_mirror"):
            a("v_add_f32_dpp v%d, v%d, v%d %s row_mask:0xf bank_mask:0xf" % (g.vAB, g.vAB, g.vAB, mod))
            a("v_add_f32_dpp v%d, v%d, v%d %s row_mask:0xf bank_mask:0xf" % (g.vAB + 1, g.vAB + 1, g.vAB + 1, mod))
        ln_scalars(g, g.vAB, g.vAB + 1, T[6])
        epochs()
    g.q3 = g.capture(chain)
    q_w12(g, "w2", sST[2], 9, LA2, "w2", fixed=True)
    a.lds("ds_read_b64 %s, v%d offset:%d" % (vr(g.vAB + 4, 2), T[11], LA), "res")
    a.lds("ds_read_b64 %s, v%d offset:%d" % (vr(g.vAB + 6, 2), T[11], LA + 2048), "res")
    g.gap = g.opt("p1gap", 56)
    g.clk = g.gap
    last = []

    def w2b():
        q_w12(g, "w2", sST[3], 9, LB, "w2", fixed=True)
        last.append(g.q.pop())
    assert 2 * NOWN == 10
    gemm_small(lambda t, mt: (g.vXR + (t & 1), LA + (t >> 1) * 4096 + mt * 2048), lambda t: LB + 4096 * t, True,
               {2 * NOWN: (["w1b"], w2b)})
    g.gap = gap
    g.fill_alu(100)
    a.lds("ds_write_b64 v%d, %s" % (T[8], vr(g.vAB, 2)), "stw")
    g.burst()
    a.wait_lg()
    a("s_barrier")
    a.lds("ds_read_b64 %s, v%d" % (vr(g.vAB, 2), T[0]), "ab")
    a.lds("ds_read_b64 %s, v%d offset:128" % (vr(g.vAB + 2, 2), T[0]), "ab")
    g.emit(last[0])
    a.wait_lg()
    g.stamp(24)
    for mt in range(2):
        ln_fix(g, acc + 4 * mt, g.vAB + 2 * mt, cs)
    gelu_pk(g, acc, g.vXF, 8)
    P = g.vXF + 8
    for mt in range(2):
        for h in range(2):
            a("v_cvt_pk_bf16_f32 v%d, v%d, v%d" % (P + 2 * mt + h, acc + 4 * mt + 2 * h, acc + 4 * mt + 2 * h + 1))
    a("v_permlane16_swap_b32 v%d, v%d" % (P, P + 2))
    a("v_permlane16_swap_b32 v%d, v%d" % (P + 1, P + 3))
    for i in range(4):
        a("v_cndmask_b32 v%d, 0, v%d, %s" % (P + i, P + i, sSHM))
    a.vmem("buffer_store_dwordx4 %s, v%d, %s, %s offen" % (vr(P, 4), T[9], srd("ws"), sHSO), "hs")
    g.stamp(2)
    q_stage(g, "w3", 0, 6)
    q_stage(g, "w3", 1, 7)
    g.burst(g.opt("s01a", 5))
    a("s_mul_i32 %s, %s, 72" % (sT2, sBL))
    a("s_add_u32 %s, %s, %s" % (sT2, sT2, sK))
    a("s_lshl_b32 %s, %s, %d" % (sU0, sK, FLS))
    a("s_mul_i32 %s, %s, %d" % (sT1, sBL, 9 * 128))
    a("s_add_u32 %s, %s, %s" % (sU0, sU0, sT1))
    a("s_add_u32 %s, %s, %d" % (sU0, sU0, FL + FL_G1))
    a("s_add_u32 %s, %s, %d" % (sU1, sBAT, HS))
    a("v_add_u32 v%d, %d, v%d" % (T[8], LA2, g.vL16))
    signal_local(g, 0x10, "hs")
    g.stamp(25)
    g.burst(g.opt("s01b", 5))
    hold, g.q = g.q, []
    for t in range(18):
        g.q2 += tr12(g, t, LA2 + 4096 * t)
    g.fill_lds(100)
    a.wait_lg()
    wait_local(g, 0x10, 9, sT2, sU0, sCB, sNK)
    g.stamp(3)

    assert not hold
    q_linear(g, LA2, sU1, 9, "hsl")
    g.burst()
    a("s_lshl_b32 %s, %s, %d" % (sU0, sK, FLS))
    a("s_lshl_b32 %s, %s, 9" % (sT0, sJ))
    a("s_add_u32 %s, %s, %s" % (sU0, sU0, sT0))
    a("s_add_u32 %s, %s, %d" % (sU0, sU0, FL + FL_F2))
    a("v_and_b32 v%d, 31, v%d" % (T[9], L))
    a("v_lshlrev_b32 v%d, 3, v%d" % (T[9], T[9]))
    a("v_add_u32 v%d, %d, v%d" % (T[9], LPS, T[9]))
    a("s_lshl_b32 %s, %s, 8" % (sT0, sW))
    a("v_add_u32 v%d, %s, v%d" % (T[11], sT0, T[9]))
    q_stage(g, "w3", 2, 4)
    q_stage(g, "w3", 3, 5)
    sync(g, [("hsl", 3)])
    g.stamp(4)
    g.clk = 0
    gemm_small(lambda t, mt: (T[8], t * 2048 + mt * 1024), lambda t: None, False, {8: ([("hsl", 8)], None)})
    for mt in range(2):
        for h in range(2):
            p = P + 2 * mt + h
            x = g.vAB + 4 + 2 * mt + h
            u = g.vXF + 16 + 4 * (2 * mt + h)
            a("v_cvt_pk_bf16_f32 v%d, v%d, v%d" % (p, acc + 4 * mt + 2 * h, acc + 4 * mt + 2 * h + 1))
            a("v_lshlrev_b32 v%d, 16, v%d" % (u, x))
            a("v_and_b32 v%d, 0xffff0000, v%d" % (u + 1, x))
            a("v_lshlrev_b32 v%d, 16, v%d" % (u + 2, p))
            a("v_and_b32 v%d, 0xffff0000, v%d" % (u + 3, p))
            a("v_pk_add_f32 %s, %s, %s" % (vr(u, 2), vr(u, 2), vr(u + 2, 2)))
            a("v_cvt_pk_bf16_f32 v%d, v%d, v%d" % (p, u, u + 1))
    a("v_permlane16_swap_b32 v%d, v%d" % (P, P + 2))
    a("v_permlane16_swap_b32 v%d, v%d" % (P + 1, P + 3))
    a.vmem("buffer_store_dwordx4 %s, v%d, %s, %s offen sc1" % (vr(P, 4), T[10], srd("ws"), sX1O), "x1")
    g.stamp(5)
    S = g.vAB
    for i in range(4):
        a("v_mov_b32 v%d, 0" % (S + i))
    for i in range(4):
        a("v_dot2c_f32_bf16 v%d, v%d, v%d" % (S, P + i, g.vONES))
        a("v_dot2c_f32_bf16 v%d, v%d, v%d" % (S + 1, P + i, P + i))
    a("v_permlane32_swap_b32 v%d, v%d" % (S, S + 2))
    a("v_permlane32_swap_b32 v%d, v%d" % (S + 1, S + 3))
    a("v_pk_add_f32 %s, %s, %s" % (vr(S, 2), vr(S, 2), vr(S + 2, 2)))
    a("s_mov_b32 exec_hi, 0")
    a.lds("ds_write_b64 v%d, %s" % (T[11], vr(S, 2)), "ps")
    a("s_mov_b32 exec_hi, -1")
    q_stage(g, "w3", 4, 0)
    q_stage(g, "w3", 5, 1)
    g.burst(g.opt("x1dma", 8))
    for s in (0, 1):
        q_tr(g, "w3", s)
    g.fill_lds(100)
    sync(g, ["x1"], "all")
    Lf = a.label("f2")
    a("s_cmp_lg_u32 %s, 0" % sW)
    a("s_cbranch_scc1 %s" % Lf)
    for i in range(4):
        a("ds_read_b64 %s, v%d offset:%d" % (vr(g.vXF + 2 * i, 2), T[9], 256 * i))
    a("v_mov_b32 v%d, %s" % (S, sNK))
    a("v_mov_b32 v%d, %s" % (S + 3, sNK))
    a("s_waitcnt lgkmcnt(0)")
    a("v_pk_add_f32 %s, %s, %s" % (vr(g.vXF, 2), vr(g.vXF, 2), vr(g.vXF + 2, 2)))
    a("v_pk_add_f32 %s, %s, %s" % (vr(g.vXF + 4, 2), vr(g.vXF + 4, 2), vr(g.vXF + 6, 2)))
    a("v_add_f32 v%d, v%d, v%d" % (S + 1, g.vXF, g.vXF + 4))
    a("v_add_f32 v%d, v%d, v%d" % (S + 2, g.vXF + 1, g.vXF + 5))
    a("s_mov_b32 exec_hi, 0")
    a("buffer_store_dwordx4 %s, v%d, %s, %s offen sc1" % (vr(S, 4), g.vL16, srd("ws"), sU0))
    a("s_mov_b32 exec_hi, -1")
    a(Lf + ":")
    g.stamp(20)
    for s, slot in ((6, 2), (7, 3), (8, 6)):
        q_stage(g, "w3", s, slot)
    g.clk = g.gap
    g.weave(g.capture(mlp_setup))
    colsum(g, [0, 1])
    sync(g, [("w3", 4)])
    g.stamp(21)
    for s in (2, 3, 4):
        q_tr(g, "w3", s)
    g.fill_lds(14)
    colsum(g, [2, 3, 4])
    g.burst()
    sync(g, [("w3", 6)])
    g.stamp(22)
    for s in (5, 6):
        q_tr(g, "w3", s)
    g.fill_lds(14)
    colsum(g, [5, 6])
    sync(g, [("w3", 8)])
    for s in (7, 8):
        q_tr(g, "w3", s)
    g.fill_lds(14)
    colsum(g, [7, 8])
    a("s_branch %s" % Lmlp)

    a(Lhelp + ":")
    a.vm = []
    a.lg = []
    g.stamp(0)
    common_setup()
    setup2()
    wbig_setup()
    mlp_setup()
    a("s_add_u32 %s, %s, %d" % (sST[3], sST[2], 56 * 8192))
    for h in range(2):
        a("s_lshl_b32 %s, %s, 6" % (sT3, sST[1]))
        if h:
            a("s_add_u32 %s, %s, 3584" % (sT3, sT3))
        a("v_add_u32 v%d, %s, v%d" % (T[0], sT3, L))
        a("v_mul_u32_u24 v%d, 7282, v%d" % (T[1], T[0]))
        a("v_lshrrev_b32 v%d, 16, v%d" % (T[1], T[1]))
        a("v_mul_u32_u24 v%d, 9, v%d" % (T[2], T[1]))
        a("v_sub_u32 v%d, v%d, v%d" % (T[0], T[0], T[2]))
        a("v_mul_u32_u24 v%d, 9216, v%d" % (T[1], T[1]))
        a("v_lshl_add_u32 v%d, v%d, 7, v%d" % (T[10 + h], T[0], T[1]))
    a("s_mul_i32 %s, %s, 1152" % (sT3, sK))
    a("s_mul_i32 %s, %s, 73728" % (sU0, sK))
    a("s_add_u32 %s, %s, %s" % (sU0, sU0, sST[2]))
    a("s_add_u32 %s, %s, %d" % (sU0, sU0, HS - 47 * 8192))
    a("s_cmp_ge_u32 %s, 47" % sST[1])
    a("s_cselect_b32 %s, %s, 0x7fffffff" % (sU0, sU0))
    epochs()
    g.stamp(1)
    if "w2touch" in opts:
        a.vmem("buffer_load_dword v%d, v%d, %s, %s offen" % (D + 1, T[8], srd("w2"), sST[2]), "touch")
        a.vmem("buffer_load_dword v%d, v%d, %s, %s offen" % (D + 2, T[8], srd("w2"), sST[3]), "touch")
    a.vmem("buffer_load_dword v%d, v%d, %s, %s offen" % (D + 7, T[8], srd("ws"), sU0), "touch")
    a.vmem("buffer_load_dword v%d, v%d, %s, %s offen" % (D + 3, T[10], srd("w3"), sT3), "touch")
    a.vmem("buffer_load_dword v%d, v%d, %s, %s offen" % (D + 4, T[11], srd("w3"), sT3), "touch")
    for s in range(8):
        q_stage(g, "w3", s, s)
    g.burst(20)
    sync(g, [("w3", 1)])
    for s in (0, 1):
        q_tr(g, "w3", s)
    g.fill_lds(14)
    colsum(g, [0, 1])
    g.burst()
    sync(g, [("w3", 4)])
    q_stage(g, "w3", 8, 0)
    g.burst()
    for s in (2, 3, 4):
        q_tr(g, "w3", s)
    g.fill_lds(14)
    colsum(g, [2, 3, 4])
    sync(g, [("w3", 6)])
    for s in (5, 6):
        q_tr(g, "w3", s)
    g.fill_lds(14)
    colsum(g, [5, 6])
    sync(g, [("w3", 8)])
    if "w4help" in opts:
        a("s_mul_i32 %s, %s, %d" % (sT0, sK, 576 * 1152))
        a("s_add_u32 %s, %s, %s" % (sT1, sT0, sST[3]))
        a("s_add_u32 %s, %s, %s" % (sT0, sT0, sST[2]))
        a("s_cmp_lt_u32 %s, 25" % sST[1])
        a("s_cselect_b32 %s, %s, 0x7fffffff" % (sT1, sT1))
        a("buffer_load_dword v%d, v%d, %s, %s offen" % (D + 5, T[8], srd("w4"), sT0))
        a("buffer_load_dword v%d, v%d, %s, %s offen" % (D + 6, T[8], srd("w4"), sT1))
    for s in (7, 8):
        q_tr(g, "w3", s)
    g.fill_lds(14)
    colsum(g, [7, 8])

    a(Lmlp + ":")
    a.vm = []
    a.lg = []
    g.stamp(6)
    if "w4help" not in opts:
        a("s_lshl_b32 %s, %s, 2" % (sT0, sJ))
        a("s_add_u32 %s, %s, %s" % (sT0, sT0, sW))
        a("s_mul_i32 %s, %s, 41" % (sT0, sT0))
        a("v_min_u32 v%d, 40, v%d" % (T[0], L))
        a("v_add_u32 v%d, %s, v%d" % (T[0], sT0, T[0]))
        a("v_min_u32 v%d, 5183, v%d" % (T[0], T[0]))
        a("v_lshlrev_b32 v%d, 7, v%d" % (T[0], T[0]))
        a("s_mul_i32 %s, %s, %d" % (sT0, sK, 576 * 1152))
        a.vmem("buffer_load_dword v%d, v%d, %s, %s offen" % (g.vEP, T[0], srd("w4"), sT0), "touch")
    a("s_lshl_b32 %s, %s, %d" % (sU0, sM, FLS))
    a("s_add_u32 %s, %s, %d" % (sU0, sU0, FL + FL_F2))
    a("s_mul_i32 %s, %s, 73728" % (sU1, sM))
    a("s_add_u32 %s, %s, %d" % (sU1, sU1, X1))
    a("v_and_b32 v%d, 15, v%d" % (T[9], L))
    a("v_lshlrev_b32 v%d, 4, v%d" % (T[9], T[9]))
    a("v_lshrrev_b32 v%d, 4, v%d" % (T[8], L))
    a("v_lshl_add_u32 v%d, v%d, 9, v%d" % (T[8], T[8], T[9]))
    a("v_add_u32 v%d, 4096, v%d" % (T[9], T[9]))
    a("s_lshr_b32 %s, %s, 1" % (sT0, sW))
    a("s_mul_i32 %s, %s, %d" % (sT0, sT0, 9 * 512))
    a("s_and_b32 %s, %s, 1" % (sT1, sW))
    a("s_lshl_b32 %s, %s, 8" % (sT1, sT1))
    a("s_add_u32 %s, %s, %s" % (sT0, sT0, sT1))
    a("s_add_u32 %s, %s, %s" % (sHSO, sU0, sT0))
    Lp, Lpd = a.label("f2poll"), a.label("f2done")
    a("s_cmp_lg_u32 %s, 0" % sW)
    a("s_cbranch_scc1 %s" % Lpd)
    a("v_min_u32 v%d, 17, v%d" % (T[0], L))
    a("v_lshlrev_b32 v%d, 9, v%d" % (T[0], T[0]))
    a("s_mov_b32 %s, 0" % sCNT)
    a(Lp + ":")
    a("buffer_load_dword v%d, v%d, %s, %s offen sc1" % (T[1], T[0], srd("ws"), sU0))
    a("s_add_u32 %s, %s, 1" % (sCNT, sCNT))
    a("s_waitcnt vmcnt(0)")
    a("v_cmp_ne_u32 vcc, %s, v%d" % (sNM, T[1]))
    a("s_cbranch_vccz %s" % Lpd)
    if g.opt("sleep", 0):
        a("s_sleep %d" % g.opt("sleep", 0))
    a("s_cmp_lt_u32 %s, 0x20000" % sCNT)
    a("s_cbranch_scc1 %s" % Lp)
    a(Lpd + ":")
    a("s_barrier")
    g.stamp(7)
    q_linear(g, LA, sU1, 18, "x1l")
    g.burst(g.opt("x1pre", 8))
    R = g.vWF + 24

    def rec_loads(emit):
        emit("buffer_load_dwordx4 %s, v%d, %s, %s offen sc1" % (vr(R, 4), T[8], srd("ws"), sHSO))
        emit("buffer_load_dwordx4 %s, v%d, %s, %s offen offset:2048 sc1" % (vr(R + 4, 4), T[8], srd("ws"), sHSO))
        emit("buffer_load_dwordx4 %s, v%d, %s, %s offen sc1" % (vr(R + 8, 4), T[9], srd("ws"), sHSO))

    def rec_check():
        a("v_xor_b32 v%d, %s, v%d" % (T[10], sNM, R))
        for r in (R + 3, R + 4, R + 7, R + 8, R + 11):
            a("v_xor_b32 v%d, %s, v%d" % (T[3], sNM, r))
            a("v_or_b32 v%d, v%d, v%d" % (T[10], T[10], T[3]))

    def rec_stats():
        a("v_add_f32 v%d, v%d, v%d" % (S, R + 1, R + 5))
        a("v_add_f32 v%d, v%d, v%d" % (S + 1, R + 2, R + 6))
        for op in ("v_permlane32_swap_b32", "v_permlane16_swap_b32"):
            a("v_mov_b32 v%d, v%d" % (S + 2, S))
            a("v_mov_b32 v%d, v%d" % (S + 3, S + 1))
            a("%s v%d, v%d" % (op, S, S + 2))
            a("%s v%d, v%d" % (op, S + 1, S + 3))
            a("v_add_f32 v%d, v%d, v%d" % (S, S, S + 2))
            a("v_add_f32 v%d, v%d, v%d" % (S + 1, S + 1, S + 3))
        a("v_add_f32 v%d, v%d, v%d" % (S, S, R + 9))
        a("v_add_f32 v%d, v%d, v%d" % (S + 1, S + 1, R + 10))
        ln_scalars(g, S, S + 1, T[2])
    rec_loads(lambda t: g.q.append(VM(t, "rec")))
    for s in range(4):
        q_stage(g, "w4", s, 4 + s)
    a("s_mul_i32 %s, %s, 18432" % (sT0, sQ))
    a("s_add_u32 %s, %s, %s" % (sT0, sT0, sWB))
    a("s_add_u32 %s, %s, %s" % (sST[0], sT0, sH2A))
    a("v_min_u32 v%d, 35, v%d" % (T[4], L))
    a("v_lshlrev_b32 v%d, 7, v%d" % (T[4], T[4]))
    touch_h = VM("buffer_load_dword v%d, v%d, %s, %s offen" % (g.vEP, T[4], srd("ws"), sST[0]), "touch")
    if "clrg" in opts:
        q_clear()
    if "tche" not in opts:
        g.q.append(touch_h)
    a("v_and_b32 v%d, 15, v%d" % (T[0], L))
    a("v_lshlrev_b32 v%d, 4, v%d" % (T[0], T[0]))
    a("v_lshrrev_b32 v%d, 5, v%d" % (T[1], L))
    a("v_lshl_add_u32 v%d, v%d, 8, v%d" % (T[0], T[1], T[0]))
    a("v_bfe_u32 v%d, v%d, 4, 1" % (T[1], L))
    a("v_add_u32 v%d, %s, v%d" % (T[2], sW, T[1]))
    a("v_and_b32 v%d, 3, v%d" % (T[3], T[2]))
    a("v_lshl_add_u32 v%d, v%d, 10, v%d" % (T[5], T[3], T[0]))
    a("v_xor_b32 v%d, 0x800, v%d" % (T[6], T[5]))
    a("v_lshl_add_u32 v%d, v%d, 3, v%d" % (T[7], T[1], T[0]))
    a("v_add_u32 v%d, %s, v%d" % (T[7], sW10, T[7]))
    for c in range(3):
        a("s_mul_i32 %s, %s, 9" % (sT0, sQ))
        if c < 2:
            a("s_lshl_b32 %s, %s, 1" % (sT1, sW))
            a("s_add_u32 %s, %s, %s" % (sT0, sT0, sT1))
            if c:
                a("s_add_u32 %s, %s, 1" % (sT0, sT0))
        else:
            a("s_add_u32 %s, %s, 8" % (sT0, sT0))
        a("s_lshr_b32 %s, %s, 1" % (sT1, sT0))
        a("s_lshl_b32 %s, %s, 12" % (sT1, sT1))
        a("s_and_b32 %s, %s, 1" % (sT0, sT0))
        a("s_lshl_b32 %s, %s, 9" % (sT0, sT0))
        a("s_add_u32 %s, %s, %s" % (sT1, sT1, sT0))
        a("s_add_u32 %s, %s, %s" % (sST[1 + c], sT1, sH2A))

    def rec_go():
        g.q3 += g.capture(rec_check) + g.capture(rec_stats)

    def tr01():
        q_tr(g, "w4", 0)
        q_tr(g, "w4", 1)
    gemm_big(g, acc, {-1: (None, [("x1l", 2)], None, None), 1: (None, [("x1l", 7)], None, None),
                      6: (None, [("x1l", 12)], None, None), 9: (None, ["rec"], None, rec_go),
                      12: (None, [("w4", 1)], None, tr01)}, False, 8)
    g.flush()
    Lrs, Lrd = a.label("recslow"), a.label("recdone")
    a("v_cmp_ne_u32 vcc, 0, v%d" % T[10])
    a("s_cbranch_vccnz %s" % Lrs)
    a(Lrd + ":")

    def rec_slow():
        Lr = a.label("recpoll")
        a(Lrs + ":")
        a("s_mov_b32 %s, 0" % sCNT)
        a(Lr + ":")
        rec_loads(a)
        a("s_add_u32 %s, %s, 1" % (sCNT, sCNT))
        a("s_waitcnt vmcnt(0)")
        rec_check()
        a("v_cmp_ne_u32 vcc, 0, v%d" % T[10])
        a("s_cmp_lt_u32 %s, 0x20000" % sCNT)
        a("s_cselect_b64 s[62:63], -1, 0")
        a("s_and_b64 vcc, vcc, s[62:63]")
        a("s_cbranch_vccnz %s" % Lr)
        rec_stats()
        a("s_branch %s" % Lrd)
    g.slow.append(rec_slow)
    a.lds("ds_write_b64 v%d, %s" % (g.vSA, vr(S, 2)), "stw")
    a.lds("ds_read_b128 %s, v%d" % (vr(g.vWF + 64, 4), g.vRA), "res")
    a.lds("ds_read_b128 %s, v%d" % (vr(g.vWF + 68, 4), g.vRA + 1), "res")
    g.stamp(9)
    a.wait_lg()
    a("s_barrier")
    for i in range(1, 4):
        a.lds("ds_read_b64 %s, v%d" % (vr(g.vAB + 2 * i, 2), g.vSA + i), "ab")
    if "clrg" not in opts:
        q_clear()
    if "tche" in opts:
        g.q.append(touch_h)
    g.burst(g.opt("clrn", 10))
    P = g.vWF
    for c, p in ((2, 0), (0, 0), (0, 1), (1, 0), (1, 1)):
        n = 8 if c < 2 else 4
        y = acc + 16 * c + 8 * p
        if c < 2:
            a.wait_lg("ab")
        for i in range(n // 4):
            ln_fix(g, y + 4 * i, g.vAB + 2 * (2 * p + i), cs + 4 * c)
        gelu_pk(g, y, g.vXF, n)
        b = P + 8 * c + 4 * p
        for i in range(n // 2):
            a("v_cvt_pk_bf16_f32 v%d, v%d, v%d" % (b + i, y + 2 * i, y + 2 * i + 1))
        if c < 2:
            a("v_permlane16_swap_b32 v%d, v%d" % (b, b + 2))
            a("v_permlane16_swap_b32 v%d, v%d" % (b + 1, b + 3))
            a.vmem("buffer_store_dwordx4 %s, v%d, %s, %s offen" % (vr(b, 4), T[5 + p], srd("ws"), sST[1 + c]), "h2a")
        else:
            a.vmem("buffer_store_dwordx2 %s, v%d, %s, %s offen" % (vr(b, 2), T[7], srd("ws"), sST[3]), "h2a")
        if (c, p) != (1, 1):
            g.burst(2 if (c, p) != (1, 0) else 10)
    g.stamp(10)
    q_stage(g, "w4", 4, 4)
    q_stage(g, "w4", 5, 5)
    g.burst(g.opt("s45", 5))
    a("s_lshl_b32 %s, %s, 5" % (sT2, sM))
    a("s_add_u32 %s, %s, %s" % (sT2, sT2, sK))
    a("s_lshl_b32 %s, %s, %d" % (sU0, sM, FLS))
    a("s_lshl_b32 %s, %s, 9" % (sT1, sK))
    a("s_add_u32 %s, %s, %s" % (sU0, sU0, sT1))
    a("s_add_u32 %s, %s, %d" % (sU0, sU0, FL + FL_G3))
    signal_local(g, 0x30, "h2a")
    flag_f0()

    g.burst()
    q_tr(g, "w4", 2)
    q_tr(g, "w4", 3)
    g.fill_lds(100)
    a.wait_lg()
    g.stamp(11)
    wait_local(g, 0x20, 4, sT2, sU0, sQ, sNM)
    g.stamp(12)
    q_linear(g, LA, sH2A, 18, "h2l")
    g.burst(g.opt("h2pre", 10))
    q_stage(g, "w4", 6, 6)
    q_stage(g, "w4", 7, 7)

    def fin_setup():
        a("v_and_b32 v%d, 7, v%d" % (T[0], L))
        a("v_lshlrev_b32 v%d, 7, v%d" % (T[10], T[0]))
        a("v_lshrrev_b32 v%d, 5, v%d" % (T[1], L))
        a("v_lshl_add_u32 v%d, v%d, 3, v%d" % (T[0], T[1], T[0]))
        a("v_lshlrev_b32 v%d, 4, v%d" % (T[0], T[0]))
        a("v_bfe_u32 v%d, v%d, 3, 1" % (T[1], L))
        a("v_mul_u32_u24 v%d, 18432, v%d" % (T[1], T[1]))
        a("v_add_u32 v%d, v%d, v%d" % (T[0], T[0], T[1]))
        a("v_bfe_u32 v%d, v%d, 4, 1" % (T[1], L))
        a("v_add_u32 v%d, %s, v%d" % (T[2], sW, T[1]))
        a("v_and_b32 v%d, 3, v%d" % (T[3], T[2]))
        a("v_mul_u32_u24 v%d, 36864, v%d" % (T[4], T[3]))
        a("v_add_u32 v%d, v%d, v%d" % (T[5], T[0], T[4]))
        a("v_xor_b32 v%d, 2, v%d" % (T[3], T[3]))
        a("v_mul_u32_u24 v%d, 36864, v%d" % (T[4], T[3]))
        a("v_add_u32 v%d, v%d, v%d" % (T[6], T[0], T[4]))
        a("v_lshl_add_u32 v%d, v%d, 3, v%d" % (T[7], T[1], T[0]))
        a("s_mul_i32 %s, %s, 2304" % (sT2, sK))
        a("s_add_u32 %s, %s, %s" % (sT2, sT2, sPART))
        a("s_lshl_b32 %s, %s, 9" % (sT0, sW))
        a("s_add_u32 %s, %s, %s" % (sST[0], sT2, sT0))
        a("s_add_u32 %s, %s, %s" % (sST[2], sINB, sT0))
        a("s_add_u32 %s, %s, 4608" % (sST[3], sST[2]))
        a("s_add_u32 %s, %s, 2048" % (sST[4], sINB))
        a("s_mul_i32 %s, %s, 36864" % (sT0, sW))
        a("s_add_u32 %s, %s, %s" % (sST[1], sT2, sT0))
        a("s_add_u32 %s, %s, 2048" % (sST[1], sST[1]))
        a("v_and_b32 v%d, 31, v%d" % (T[8], L))
        a("v_lshlrev_b32 v%d, 4, v%d" % (T[8], T[8]))
        a("v_lshrrev_b32 v%d, 5, v%d" % (T[4], L))
        a("v_mul_u32_u24 v%d, %d, v%d" % (T[4], 4 * 2304, T[4]))
        a("v_add_u32 v%d, v%d, v%d" % (T[8], T[8], T[4]))
        a("v_and_b32 v%d, 15, v%d" % (T[9], L))
        a("v_lshlrev_b32 v%d, 4, v%d" % (T[9], T[9]))
        a("v_lshrrev_b32 v%d, 4, v%d" % (T[4], L))
        a("v_mul_u32_u24 v%d, %d, v%d" % (T[4], 2 * 2304, T[4]))
        a("v_add_u32 v%d, v%d, v%d" % (T[9], T[9], T[4]))
        a("s_lshl_b32 %s, %s, 3" % (sT3, sM))
        a("s_add_u32 %s, %s, %s" % (sT3, sT3, sK))
        a("s_mul_i32 %s, %s, %d" % (sT3, sT3, 8 * 1152))
    g.q3 = g.capture(fin_setup)
    g.fill_alu(2)

    def tr45():
        q_tr(g, "w4", 4)
        q_tr(g, "w4", 5)

    def st8():
        q_stage(g, "w4", 8, 4)
        g.q.append(VM("buffer_load_dword v%d, v%d, %s, %s offen sc1" % (T[11], T[10], srd("ws"), sF0), "f0"))
    gemm_big(g, acc, {-1: (None, [("h2l", 2)], None, tr45), 1: (None, [("h2l", 7)], None, None),
                      6: (None, [("h2l", 17)], [("trb", 9)], st8),
                      10: (None, [("w4", 6)], None, lambda: q_tr(g, "w4", 6)),
                      12: (None, [("w4", 7)], None, lambda: q_tr(g, "w4", 7)),
                      14: (None, [("w4", 8)], None, lambda: q_tr(g, "w4", 8))}, True, 13)
    g.flush()
    g.stamp(14)
    Lc, Lcd = a.label("f0poll"), a.label("f0done")
    a.wait_vm()
    a("v_cmp_ne_u32 vcc, %s, v%d" % (sNM, T[11]))
    a("s_cbranch_vccnz %s" % Lc)
    a(Lcd + ":")

    def f0_slow():
        Lq = a.label("f0loop")
        a(Lc + ":")
        a("s_mov_b32 %s, 0" % sCNT)
        a(Lq + ":")
        a("buffer_load_dword v%d, v%d, %s, %s offen sc1" % (T[11], T[10], srd("ws"), sF0))
        a("s_add_u32 %s, %s, 1" % (sCNT, sCNT))
        a("s_waitcnt vmcnt(0)")
        a("v_cmp_ne_u32 vcc, %s, v%d" % (sNM, T[11]))
        a("s_cbranch_vccz %s" % Lcd)
        a("s_cmp_lt_u32 %s, 0x20000" % sCNT)
        a("s_cbranch_scc1 %s" % Lq)
        a("s_branch %s" % Lcd)
    g.slow.append(f0_slow)
    for c, p in ((0, 0), (2, 0), (1, 0), (0, 1), (1, 1)):
        n = 8 if c < 2 else 4
        y = acc + 16 * c + 8 * p
        b = P + 8 * c + 4 * p
        for i in range(n // 2):
            a("v_cvt_pk_bf16_f32 v%d, v%d, v%d" % (b + i, y + 2 * i, y + 2 * i + 1))
        if c < 2:
            a("v_permlane16_swap_b32 v%d, v%d" % (b, b + 2))
            a("v_permlane16_swap_b32 v%d, v%d" % (b + 1, b + 3))
            a("buffer_store_dwordx4 %s, v%d, %s, %s offen offset:%d sc1"
              % (vr(b, 4), T[5 + p], srd("ws"), sST[0], 256 * c))
        else:
            a("buffer_store_dwordx2 %s, v%d, %s, %s offen sc1" % (vr(b, 2), T[7], srd("ws"), sST[1]))
    g.stamp(15)

    X = g.vXF

    def poll_inbox(ninth):
        Lq, Lqd = a.label("inb"), a.label("inbdone")
        a("s_mov_b32 %s, 0" % sCNT)
        if "findrain" in opts:
            a("s_waitcnt vmcnt(0)")
        a(Lq + ":")
        for s in range(4):
            a("buffer_load_dwordx4 %s, v%d, %s, %s offen offset:%d sc1"
              % (vr(X + 4 * s, 4), T[8], srd("ws"), sST[2 + (s >> 1)], 2304 * (s & 1)))
        if ninth:
            for s in range(2):
                a("buffer_load_dwordx4 %s, v%d, %s, %s offen offset:%d sc1"
                  % (vr(X + 16 + 4 * s, 4), T[9], srd("ws"), sST[4], 2304 * s))
        a("s_add_u32 %s, %s, 1" % (sCNT, sCNT))
        a("s_waitcnt vmcnt(0)")
        n = 24 if ninth else 16
        a("v_max_u32 v%d, v%d, v%d" % (T[0], X, X + 1))
        for i in range(2, n, 2):
            a("v_max3_u32 v%d, v%d, v%d, v%d" % (T[0], T[0], X + i, X + i + 1))
        a("v_cmp_eq_u32 vcc, -1, v%d" % T[0])
        a("s_cbranch_vccz %s" % Lqd)
        a("s_cmp_lt_u32 %s, 0x8000" % sCNT)
        a("s_cbranch_scc1 %s" % Lq)
        a(Lqd + ":")

    def unpack_sum(src, n, F):
        for s in range(n):
            for i in range(4):
                lo, hi = (F + 2 * i, F + 2 * i + 1) if s == 0 else (F + 8 + 2 * i, F + 9 + 2 * i)
                a("v_lshlrev_b32 v%d, 16, v%d" % (lo, src + 4 * s + i))
                a("v_and_b32 v%d, 0xffff0000, v%d" % (hi, src + 4 * s + i))
            if s:
                for i in range(4):
                    a("v_pk_add_f32 %s, %s, %s" % (vr(F + 2 * i, 2), vr(F + 2 * i, 2), vr(F + 8 + 2 * i, 2)))

    def xlane(F, ops):
        for op in ops:
            for i in range(8):
                a("v_mov_b32 v%d, v%d" % (F + 8 + i, F + i))
            for i in range(8):
                a("%s v%d, v%d" % (op, F + i, F + 8 + i))
            for i in range(4):
                a("v_pk_add_f32 %s, %s, %s" % (vr(F + 2 * i, 2), vr(F + 2 * i, 2), vr(F + 8 + 2 * i, 2)))

    def fin(F, res, dst):
        for h in range(4):
            a("v_cvt_pk_bf16_f32 v%d, v%d, v%d" % (dst + h, F + 2 * h, F + 2 * h + 1))
        for h in range(4):
            a("v_lshlrev_b32 v%d, 16, v%d" % (F + 2 * h, dst + h))
            a("v_and_b32 v%d, 0xffff0000, v%d" % (F + 2 * h + 1, dst + h))
            a("v_lshlrev_b32 v%d, 16, v%d" % (F + 8 + 2 * h, res + h))
            a("v_and_b32 v%d, 0xffff0000, v%d" % (F + 9 + 2 * h, res + h))
        for h in range(4):
            a("v_pk_add_f32 %s, %s, %s" % (vr(F + 2 * h, 2), vr(F + 2 * h, 2), vr(F + 8 + 2 * h, 2)))
        for h in range(4):
            a("v_cvt_pk_bf16_f32 v%d, v%d, v%d" % (dst + h, F + 2 * h, F + 2 * h + 1))

    Lx, Ly = a.label("fin"), a.label("fin")
    a("s_cmp_lg_u32 %s, 3" % sW)
    a("s_cbranch_scc1 %s" % Lx)
    poll_inbox(True)
    unpack_sum(X + 16, 2, acc)
    xlane(acc, ["v_permlane32_swap_b32", "v_permlane16_swap_b32"])
    fin(acc, g.vWF + 68, g.vAB + 4)
    a("s_mov_b64 exec, 0xffff")
    a("buffer_store_dwordx4 %s, v%d, %s, %s offen" % (vr(g.vAB + 4, 4), g.vOA + 1, srd("out"), sT3))
    a("s_mov_b64 exec, -1")
    a("s_branch %s" % Ly)
    a(Lx + ":")
    poll_inbox(False)
    g.stamp(16)
    a(Ly + ":")
    unpack_sum(X, 4, acc)
    xlane(acc, ["v_permlane32_swap_b32"])
    fin(acc, g.vWF + 64, g.vAB)
    a("s_mov_b32 exec_hi, 0")
    a("buffer_store_dwordx4 %s, v%d, %s, %s offen" % (vr(g.vAB, 4), g.vOA, srd("out"), sT3))
    Lz = a.label("fin")
    a("s_or_b32 %s, %s, %s" % (sT0, sK, sQ))
    a("s_or_b32 %s, %s, %s" % (sT0, sT0, sW))
    a("s_cmp_lg_u32 %s, 0" % sT0)
    a("s_cbranch_scc1 %s" % Lz)
    a("s_lshl_b32 %s, %s, %d" % (sT0, sM, FLS))
    a("v_mov_b32 v%d, %s" % (T[0], sT0))
    a("v_mov_b32 v%d, %s" % (T[1], sNM))
    a("s_mov_b64 exec, 1")
    a("buffer_store_dword v%d, v%d, %s, 0 offen sc1" % (T[1], T[0], srd("ws")))
    a(Lz + ":")
    if g.stamps:
        a("s_mov_b64 exec, -1")
        g.stamp(17)
        a("s_waitcnt vmcnt(0)")
        g.stamp(18)
        for i in range(len(g.fines)):
            a("v_writelane_b32 v%d, s%d, %d" % (g.vSTAMP, 90 + 2 * i, 32 + i))
        a("v_writelane_b32 v%d, s64, 63" % g.vSTAMP)
        a("s_cmp_lg_u32 %s, 0" % sW)
        a("s_cbranch_scc1 %s" % Lend)
        a("s_lshl_b32 %s, s2, 8" % sT0)
        a("s_add_u32 %s, %s, %d" % (sT0, sT0, STAMP))
        a("v_lshlrev_b32 v%d, 2, v%d" % (T[0], L))
        a("buffer_store_dword v%d, v%d, %s, %s offen" % (g.vSTAMP, T[0], srd("ws"), sT0))
        if probe:
            a("s_cmp_lg_u32 s2, %d" % probe[0])
            a("s_cbranch_scc1 %s" % Lend)
            a("v_readlane_b32 %s, v%d, %d" % (sT1, g.vSTAMP, probe[1]))
            a("s_sub_u32 %s, %s, s64" % (sT1, sT1))
            a("s_mul_i32 %s, %s, %d" % (sT1, sT1, probe[2]))
            a("s_add_u32 %s, %s, 10000" % (sT1, sT1))
            a("s_min_u32 %s, %s, 200000" % (sT1, sT1))
            a("L_probe:")
            a("s_memrealtime s[60:61]")
            a("s_waitcnt lgkmcnt(0)")
            a("s_sub_u32 %s, s60, s64" % sT2)
            a("s_cmp_lt_u32 %s, %s" % (sT2, sT1))
            a("s_cbranch_scc1 L_probe")
    a(Lend + ":")
    a("s_endpgm")
    for f in g.slow:
        a("s_nop 7")
        a("s_nop 7")
        f()

    body = a.text()
    src = HEADER + "; @launch grid=(256,1,1) block=(256,1,1) lds=%d\n" % LDS_BYTES
    src += '.amdgcn_target "amdgcn-amd-amdhsa--gfx950"\n.text\n.globl %s_kernel\n.p2align 8\n.type %s_kernel,@function\n%s_kernel:\n' % (NAME, NAME, NAME)
    src += body
    src += '''.section .rodata,"a"
.p2align 6
.amdhsa_kernel %s_kernel
  .amdhsa_next_free_vgpr 512
  .amdhsa_next_free_sgpr 102
  .amdhsa_accum_offset 256
  .amdhsa_group_segment_fixed_size 0
  .amdhsa_kernarg_size 64
  .amdhsa_user_sgpr_count 2
  .amdhsa_user_sgpr_kernarg_segment_ptr 1
  .amdhsa_system_sgpr_workgroup_id_x 1
.end_amdhsa_kernel
''' % NAME
    return src


if __name__ == "__main__":
    out = sys.argv[1]
    probe = None
    for o in sys.argv[2:]:
        if o.startswith("probe="):
            probe = tuple(int(x) for x in o[6:].split(","))
    open(out, "w").write(build(set(sys.argv[2:]), probe))
```

```python
import sys, struct
from asmlib import Asm

NAME = "standalone__mixer_s_mlp__sampling"
HEADER = open("cdna_kernels/%s.s.ref" % NAME).read().split("; Override")[0]

FL = 0
FL_F0, FL_G1, FL_G3, FL_F2 = 128, 128 * 33, 128 * 51, 16384
FLS = 15
HS = 0x40000
X1 = 0x100000
H2A = 0x200000
PART = 0x800000
PB = 3072
STAMP = 0x2000000
LA, LB, LST = 0, 73728, 147456
LA2 = LA + 36864
LPS = LST + 512
LDS_BYTES = 163840
SLOT = 18432

SRD = dict(x=8, w1=12, w2=16, w3=20, w4=24, out=28, dbg=32, ws=36)
SIZES = dict(x=589824, w1=663552, w2=663552, w3=5308416, w4=5308416, out=589824, dbg=256, ws=268435456)
srd = lambda n: "s[%d:%d]" % (SRD[n], SRD[n] + 3)
sK, sJ, sM, sQ, sW, sBL, sCB, sXCC, sNM, sNK = ["s%d" % i for i in range(40, 50)]
sT0, sT1, sT2, sT3, sOFF, sCNT, sM0, sWG, sU0, sU1 = ["s%d" % i for i in range(50, 60)]
sSTAMP = "s[60:61]"
sW10, sWB, sH2A, sBAT, sW3B, sW4B = ["s%d" % i for i in range(66, 72)]
sC1 = "s[72:73]"
sW0M, sW1M = "s[74:75]", "s[88:89]"
sSHM = "s[76:77]"
sHSO, sX1O = "s78", "s79"
sST = ["s80", "s81", "s82", "s83", "s84"]
sPART, sINB, sW49 = "s85", "s86", "s87"
sW4C = ["s71", "s88", "s89", "s3"]
K0 = 2.0 * 0.7978845608028654 * 1.4426950408889634
K1 = K0 * 0.044715
MFMA = "v_mfma_f32_16x16x32_bf16"


def f2h(x):
    return "0x%08x" % struct.unpack("<I", struct.pack("<f", x))[0]


def vr(b, n):
    return "v[%d:%d]" % (b, b + n - 1) if n > 1 else "v%d" % b


def ar(b, n):
    return "a[%d:%d]" % (b, b + n - 1) if n > 1 else "a%d" % b


I = lambda text: [("i", text, None)]
VM = lambda text, tag: [("vm", text, tag)]
LD = lambda text, tag: [("lds", text, tag)]


class G:
    def __init__(self, opts):
        self.a = Asm()
        self.o = opts
        self.stamps = "stamps" in opts
        self.nv = 1
        self.q = []
        self.q2 = []
        self.q3 = []
        self.clk = 0
        self.gap = self.opt("gap", 64)
        self.slot_of = {}
        self.maxlds = 1
        self.any3 = False
        self.extra = self.opt('extra', 20)
        self.fines = []
        self.only = []
        for o in opts:
            if o.startswith('fine='):
                self.fines = o[5:].split(',')
            if o.startswith('only='):
                self.only = [int(x) for x in o[5:].split(',')]

    def v(self, n=1, align=1):
        self.nv = (self.nv + align - 1) // align * align
        r = self.nv
        self.nv += n
        assert self.nv <= 256, self.nv
        return r

    def stamp(self, i):
        if not self.stamps or (self.only and i not in self.only):
            return
        a = self.a
        a("s_memrealtime %s" % sSTAMP)
        a("s_waitcnt lgkmcnt(0)")
        a.lg = []
        a("v_writelane_b32 v%d, s60, %d" % (self.vSTAMP, i))

    def fine(self, key):
        if key in self.fines:
            i = self.fines.index(key)
            self.a("%s s[%d:%d]" % ("s_memtime" if "finecyc" in self.o else "s_memrealtime", 90 + 2 * i, 91 + 2 * i))

    def opt(self, name, default):
        for o in self.o:
            if o.startswith(name + "="):
                return int(o[len(name) + 1:])
        return default

    def emit(self, f):
        for kind, text, tag in f:
            if kind == "vm":
                self.a.vmem(text, tag)
                self.clk = -self.extra if isinstance(tag, tuple) and tag[0] in ("w3", "w4") and len(f) == 1 else 0
            elif kind == "lds":
                self.a.lds(text, tag)
            else:
                self.a(text)
        return len(f)

    def fill_vm(self, n, cyc):
        self.clk += cyc
        k = 0
        while k < n and self.q and (self.clk >= self.gap or not any(x[0] == "vm" for x in self.q[0])):
            k += self.emit(self.q.pop(0))
        return k

    def fill_lds(self, n):
        k = 0
        while k < n and self.q2:
            k += self.emit(self.q2.pop(0))
        return k

    def fill_alu(self, n):
        k = 0
        while k < n and self.q3:
            self.a(self.q3.pop(0))
            k += 1
        return k

    def mgap(self, ds=(), n=2, cyc=16):
        self.clk += cyc
        is_s = lambda f: len(f) == 1 and f[0][0] == "i"
        ready = lambda: self.q and (is_s(self.q[0]) or self.clk >= self.gap)
        if ready() and len(self.q[0]) == 3 and (not ds or self.any3):
            self.emit(self.q.pop(0))
            for f in ds:
                f()
            return
        if self.q and is_s(self.q[0]):
            self.emit(self.q.pop(0))
        elif self.q3 and self.q3[0].startswith("s_"):
            self.fill_alu(1)
        for f in ds:
            f()
            n -= 1
        lds_used = len(ds)
        while n > 0:
            if ready() and len(self.q[0]) == 1:
                self.emit(self.q.pop(0))
            elif self.q2 and lds_used < self.maxlds:
                self.fill_lds(1)
                lds_used += 1
            elif self.q3:
                self.fill_alu(1)
                lds_used = 9
            else:
                break
            n -= 1

    def burst(self, nvm=10 ** 6):
        while nvm > 0 and self.q:
            f = self.q.pop(0)
            nvm -= sum(x[0] == "vm" for x in f)
            self.emit(f)

    def flush(self):
        self.burst()
        self.fill_lds(10 ** 6)
        self.fill_alu(10 ** 6)

    def capture(self, fn):
        keep, self.a.lines = self.a.lines, []
        fn()
        got, self.a.lines = [l.strip() for l in self.a.lines], keep
        return got

    def weave(self, lines):
        for l in lines:
            self.a(l)
            if not l.startswith("s_cmp"):
                self.fill_vm(3, 4)


def gelu_pk(g, ys, t):
    a = g.a
    n = 2 * len(ys)
    prs = [(y, t + 2 * i) for i, y in enumerate(ys)]
    for r, u in prs:
        a("v_pk_mul_f32 %s, %s, %s" % (vr(u, 2), vr(r, 2), vr(r, 2)))
    for r, u in prs:
        a("v_pk_fma_f32 %s, %s, %s, %s" % (vr(u, 2), vr(u, 2), sC1, vr(g.vK0, 2)))
    for r, u in prs:
        a("v_pk_mul_f32 %s, %s, %s" % (vr(u, 2), vr(u, 2), vr(r, 2)))
    for i in range(n):
        a("v_exp_f32 v%d, v%d" % (t + i, t + i))
    for r, u in prs:
        a("v_pk_add_f32 %s, %s, 1.0 op_sel_hi:[1,0]" % (vr(u, 2), vr(u, 2)))
    for i in range(n):
        a("v_rcp_f32 v%d, v%d" % (t + i, t + i))
    for r, u in prs:
        a("v_pk_mul_f32 %s, %s, %s" % (vr(r, 2), vr(r, 2), vr(u, 2)))


def ln_fix(g, y, ab, cs):
    a = g.a
    for h in (0, 2):
        a("v_pk_mul_f32 %s, %s, %s op_sel_hi:[1,0]" % (vr(y + h, 2), vr(y + h, 2), vr(ab, 2)))
    for h in (0, 2):
        a("v_pk_fma_f32 %s, %s, %s, %s op_sel:[0,1,0]" % (vr(y + h, 2), vr(cs + h, 2), vr(ab, 2), vr(y + h, 2)))


def ln_scalars(g, s, q, t):
    a = g.a
    a("v_mul_f32 v%d, %s, v%d" % (s, f2h(1.0 / 576), s))
    a("v_mul_f32 v%d, %s, v%d" % (q, f2h(1.0 / 576), q))
    a("v_fma_f32 v%d, -v%d, v%d, v%d" % (q, s, s, q))
    a("v_max_f32 v%d, 0, v%d" % (q, q))
    a("v_cvt_pk_bf16_f32 v%d, v%d, v%d" % (t, s, q))
    a("v_lshlrev_b32 v%d, 16, v%d" % (s, t))
    a("v_and_b32 v%d, 0xffff0000, v%d" % (q, t))
    a("v_add_f32 v%d, %s, v%d" % (q, f2h(1e-5), q))
    a("v_cvt_pk_bf16_f32 v%d, v%d, v%d" % (t, q, q))
    a("v_lshlrev_b32 v%d, 16, v%d" % (q, t))
    a("v_sqrt_f32 v%d, v%d" % (q, q))
    a("v_cvt_pk_bf16_f32 v%d, v%d, v%d" % (t, q, q))
    a("v_lshlrev_b32 v%d, 16, v%d" % (q, t))
    a("v_rcp_f32 v%d, v%d" % (t, q))
    a("v_mul_f32 v%d, -v%d, v%d" % (q, s, t))
    a("v_mov_b32 v%d, v%d" % (s, t))


def signal_local(g, val, tag):
    a = g.a
    a("s_or_b32 %s, %s, %d" % (sT0, sXCC, val))
    a("v_mov_b32 v%d, %s" % (g.vT[0], sT0))
    a("v_mov_b32 v%d, %s" % (g.vT[1], sWG))
    a.wait_vm(tag)
    a("s_barrier")
    a("s_mov_b64 exec, %s" % sW0M)
    a("buffer_store_byte v%d, v%d, %s, 0 offen" % (g.vT[0], g.vT[1], srd("dbg")))
    a("s_mov_b64 exec, -1")


def wait_local(g, val, n, first_s, goff_s, me_s, nonce):
    a = g.a
    Ld, L1, Ls = a.label("wl_done"), a.label("wl_fast"), a.label("wl_slow")
    t0, t1, t2, t3 = g.vT[:4]
    a("s_cmp_lg_u32 %s, 0" % sW)
    a("s_cbranch_scc1 %s" % Ld)
    a("v_min_u32 v%d, %d, v%d" % (t1, n - 1, g.vLANE))
    a("v_lshl_add_u32 v%d, v%d, 3, %s" % (t0, t1, first_s))
    a("s_or_b32 %s, %s, %d" % (sT0, sXCC, val))
    a("s_mov_b32 %s, 0" % sCNT)
    a(L1 + ":")
    a("s_cmp_ge_u32 %s, 64" % sCNT)
    a("s_cbranch_scc1 %s" % Ls)
    a("buffer_load_ubyte v%d, v%d, %s, 0 offen sc1" % (t2, t0, srd("dbg")))
    a("s_add_u32 %s, %s, 1" % (sCNT, sCNT))
    a("s_waitcnt vmcnt(0)")
    a("v_and_b32 v%d, %d, v%d" % (t3, val | 7, t2))
    a("v_cmp_ne_u32 vcc, %s, v%d" % (sT0, t3))
    a("s_cbranch_vccnz %s" % L1)
    a(Ld + ":")
    a("s_barrier")

    def slow():
        L2, L3 = a.label("wl_poll"), a.label("wl_pub")
        a(Ls + ":")
        a("buffer_wbl2 sc1")
        a("v_lshl_add_u32 v%d, v%d, 7, %s" % (t1, t1, goff_s))
        a("s_waitcnt vmcnt(0)")
        a("s_lshl_b32 %s, %s, 7" % (sT1, me_s))
        a("s_add_u32 %s, %s, %s" % (sT1, sT1, goff_s))
        a("v_mov_b32 v%d, %s" % (t2, sT1))
        a("v_mov_b32 v%d, %s" % (t3, nonce))
        a("s_mov_b64 exec, 1")
        a("buffer_store_dword v%d, v%d, %s, 0 offen sc1" % (t3, t2, srd("ws")))
        a("s_mov_b64 exec, -1")
        a(L2 + ":")
        a("buffer_load_ubyte v%d, v%d, %s, 0 offen sc1" % (t2, t0, srd("dbg")))
        a("buffer_load_dword v%d, v%d, %s, 0 offen sc1" % (t3, t1, srd("ws")))
        a("s_waitcnt vmcnt(0)")
        a("v_and_b32 v%d, %d, v%d" % (t2, val | 7, t2))
        a("v_cmp_ne_u32 vcc, %s, v%d" % (sT0, t2))
        a("v_cmp_ne_u32 s[62:63], %s, v%d" % (nonce, t3))
        a("s_and_b64 vcc, vcc, s[62:63]")
        a("s_cbranch_vccz %s" % L3)
        a("s_add_u32 %s, %s, 1" % (sCNT, sCNT))
        a("s_cmp_lt_u32 %s, 0x20000" % sCNT)
        a("s_cbranch_scc1 %s" % L2)
        a(L3 + ":")
        a("buffer_inv sc1")
        a("s_waitcnt vmcnt(0)")
        a("s_branch %s" % Ld)
    g.slow.append(slow)


def q_linear(g, lds_base, glob_s, per_wave, tag):
    g.q.append(I("s_add_u32 m0, %s, %d" % (sW10, lds_base)))
    g.q.append(I("s_add_u32 %s, %s, %s" % (sOFF, sW10, glob_s)))
    for i in range(per_wave):
        g.q.append(VM("buffer_load_dwordx4 v%d, %s, %s offen sc1 lds" % (g.vL16, srd("ws"), sOFF), (tag, i)))
        if i + 1 < per_wave:
            g.q.append(I("s_add_u32 m0, m0, 4096"))
            g.q.append(I("s_add_u32 %s, %s, 4096" % (sOFF, sOFF)))


def q_w12(g, name, t0_s, n, lds0, tag, fixed=False):
    if isinstance(t0_s, int):
        g.q.append(I("s_add_u32 m0, %s, %d" % (sW10, lds0 + 4096 * t0_s)))
        g.q.append(I("s_mov_b32 %s, %d" % (sOFF, 36864 * t0_s)))
    elif fixed:
        g.q.append(I("s_add_u32 m0, %s, %d" % (sW10, lds0)))
        g.q.append(I("s_mul_i32 %s, %s, 36864" % (sOFF, t0_s)))
    else:
        g.q.append(I("s_lshl_b32 %s, %s, 12" % (sM0, t0_s)))
        g.q.append(I("s_add_u32 %s, %s, %s" % (sM0, sM0, sW10)))
        g.q.append(I("s_add_u32 m0, %s, %d" % (sM0, lds0)))
        g.q.append(I("s_mul_i32 %s, %s, 36864" % (sOFF, t0_s)))
    for t in range(n):
        g.q.append(VM("buffer_load_dwordx4 v%d, %s, %s offen lds" % (g.vW12, srd(name), sOFF), tag))
        if t < n - 1:
            g.q.append(I("s_add_u32 m0, m0, 4096"))
            g.q.append(I("s_add_u32 %s, %s, 36864" % (sOFF, sOFF)))


def tr12(g, t, addr):
    bases = [(LA2, g.vTR12), (LB, g.vTR12 + 1), (LB + 36864, g.vTR12 + 2)]
    b, v = [x for x in bases if x[0] <= addr][-1]
    return [LD("ds_read_b64_tr_b16 %s, v%d offset:%d" % (vr(g.vWF + 4 * t, 2), v, addr - b), ("tr12", t)),
            LD("ds_read_b64_tr_b16 %s, v%d offset:%d" % (vr(g.vWF + 4 * t + 2, 2), v, addr - b + 512), ("tr12", t))]


def q_stage(g, name, s, slot):
    vb = g.vWB if name == "w3" else g.vWB + 5
    g.slot_of[(name, s)] = slot
    g.q.append(I("s_add_u32 m0, %s, %d" % (sWB, slot * SLOT)))
    if name == "w3":
        g.q.append(I("s_add_u32 %s, %s, %d" % (sOFF, sW3B, s * 64 * 9216)))
    elif s < 8:
        g.q.append(I("s_add_u32 %s, %s, %d" % (sOFF, sW4C[s >> 1], (s & 1) * 64 * 1152)))
    else:
        g.q.append(I("s_mov_b32 %s, %s" % (sOFF, sW49)))
    g.q.append(I("s_mov_b32 exec_hi, 0")
               + VM("buffer_load_dwordx4 v%d, %s, %s offen lds" % (vb, srd(name), sOFF), (name, s))
               + I("s_mov_b32 exec_hi, -1"))
    for i in range(1, 5):
        g.q.append(VM("buffer_load_dwordx4 v%d, %s, %s offen offset:%d lds"
                      % (vb + i, srd(name), sOFF, 512 + 1024 * (i - 1)), (name, s)))


def q_tr(g, name, s):
    slot = g.slot_of[(name, s)]
    hi = slot // 3
    for kk in range(2):
        t = 2 * s + kk
        off = (slot % 3) * SLOT + kk * 9216
        for c in range(3):
            base = g.vTRB + hi if c < 2 else g.vTRB + 3 + hi
            o = off + (32 if c == 1 else 0)
            r = 12 * t + 4 * c
            g.q2.append(LD("ds_read_b64_tr_b16 %s, v%d offset:%d" % (ar(r, 2), base, o), ("trb", t)))
            g.q2.append(LD("ds_read_b64_tr_b16 %s, v%d offset:%d" % (ar(r + 2, 2), base, o + 4608), ("trb", t)))


def colsum(g, stages):
    a = g.a
    for s in stages:
        for t in (2 * s, 2 * s + 1):
            a.wait_lg(("trb", t))
            for c in range(3):
                d = vr(g.vCS + 4 * c, 4)
                a("%s %s, %s, %s, %s" % (MFMA, d, ar(12 * t + 4 * c, 4), vr(g.vONES, 4), d if t else "0"))
                k = g.fill_lds(2)
                if k < 2:
                    g.mgap(n=2 - k)
                else:
                    g.clk += 20


def force_issue(g, tags):
    while any(k == "vm" and tg in tags for f in g.q for k, _, tg in f):
        g.burst(1)


def sync(g, vmt, lgt=None):
    a = g.a
    force_issue(g, vmt)
    if lgt == "all":
        assert not g.q2
        a.wait_lg()
    elif lgt:
        assert not any(tg in lgt for f in g.q2 for _, _, tg in f), lgt
        a.wait_lg(lgt)
    a.wait_vm(vmt)
    a("s_barrier")


def gemm_seq(g, acc, frags, gates, need_tr, key):
    a = g.a
    AH, NS = 8, 12

    def rd(n):
        t, i = frags[n]
        base = g.vXA + i if t < 16 else g.vXA + 4 + i
        a.lds("ds_read_b128 %s, v%d offset:%d" % (vr(g.vXF + 4 * (n % NS), 4), base, (t & 15) * 4096), ("xf", n))
    for n in range(min(AH, len(frags))):
        rd(n)
    waited = -1
    for n, (t, i) in enumerate(frags):
        x = vr(g.vXF + 4 * (n % NS), 4)
        seq = [(vr(acc + 16 * c + 4 * i, 4), ar(12 * t + 4 * c, 4)) for c in range(2)]
        if i == 0:
            seq.append((vr(acc + 32, 4), ar(12 * t + 8, 4)))
        tags = []
        if n > waited:
            waited = min(n + (1 if n == 0 else 3), len(frags) - 1)
            tags.append(("xf", waited))
        if need_tr:
            while any(tg == ("trb", t) for f in g.q2 for _, _, tg in f):
                g.fill_lds(1)
            tags.append(("trb", t))
        a.wait_lg(tags)
        for m, (d, A) in enumerate(seq):
            a("%s %s, %s, %s, %s" % (MFMA, d, A, x, d if t else "0"))
            if m == 0:
                g.fine("%s_%d_%d" % (key, t, i))
                if (t, i) in gates:
                    vmt, lgt, post = gates[(t, i)]
                    if vmt is not None:
                        sync(g, vmt, lgt)
                    if post:
                        post()
            lastm = m == len(seq) - 1
            if m == 0 and n + AH < len(frags):
                g.mgap([lambda: rd(n + AH)])
            else:
                g.mgap(n=1 if lastm and n == waited else 2)


def full(t0, t1):
    return [(t, i) for t in range(t0, t1) for i in range(4)]


def build(opts, probe=None):
    g = G(opts)
    a = g.a
    g.slow = []
    g.vLANE = g.v()
    g.vL16 = g.v()
    g.vSTAMP = g.v()
    g.vK0 = g.v(2, 2)
    g.vT = [g.v() for _ in range(12)]
    g.vEP = g.v(2)
    g.vW12 = g.v()
    g.vTR12 = g.v(3)
    g.vXD = g.v()
    g.vXR = g.v(2)
    g.vWB = g.v(10)
    g.vTRB = g.v(6)
    g.vXA = g.v(8)
    g.vRA = g.v(2)
    g.vOA = g.v(2)
    g.vSA = g.v(4)
    g.vONES = g.v(4, 4)
    g.vCA = g.v(5)
    g.vXF = g.v(48, 4)
    g.vACC = g.v(36, 4)
    g.vCS = g.v(12, 4)
    g.vAB = g.v(8, 4)
    g.vWF = g.v(72, 4)
    T = g.vT
    L = g.vLANE
    acc, cs = g.vACC, g.vCS
    Lend, Lwork, Lhelp, Lmlp = "L_end", "L_work", "L_help", "L_mlp"
    NOWN = g.opt("nown", 5)
    D = g.vXF

    a("s_cmp_ge_u32 s2, 256")
    a("s_cbranch_scc1 %s" % Lend)
    if g.stamps:
        a("s_memrealtime s[64:65]")
    for i, n in enumerate(["x", "w1", "w2", "w3", "w4", "out", "dbg", "ws"]):
        a("s_load_dwordx2 s[%d:%d], s[0:1], %d" % (SRD[n], SRD[n] + 1, 8 * i))
    a("v_lshrrev_b32 v%d, 6, v0" % T[0])
    a("v_and_b32 v%d, 63, v0" % L)
    a("v_readfirstlane_b32 %s, v%d" % (sW, T[0]))
    if "teamshift" in opts:
        a("s_lshr_b32 %s, s2, 5" % sK)
        a("s_and_b32 %s, s2, 31" % sJ)
    else:
        a("s_and_b32 %s, s2, 7" % sK)
        a("s_lshr_b32 %s, s2, 3" % sJ)
    a("s_getpc_b64 s[4:5]")
    a("L_pc:")
    a("s_lshl_b32 %s, %s, 2" % (sT0, sJ))
    a("s_add_u32 %s, %s, %s" % (sT0, sT0, sW))
    a("s_lshl_b32 %s, %s, 8" % (sT0, sT0))
    a("v_lshl_add_u32 v%d, v%d, 7, %s" % (T[0], L, sT0))
    a("v_min_u32 v%d, L_end-L_pc, v%d" % (T[0], T[0]))
    a("s_mov_b64 exec, 3")
    a("global_load_dword v%d, v%d, s[4:5]" % (g.vEP, T[0]))
    a("s_mov_b64 exec, -1")
    for n in ("x", "w1"):
        a("s_mov_b32 s%d, %d" % (SRD[n] + 2, SIZES[n]))
        a("s_mov_b32 s%d, 0x20000" % (SRD[n] + 3))
    a("s_lshl_b32 %s, %s, 10" % (sW10, sW))
    if g.stamps:
        a("v_mov_b32 v%d, 0" % g.vSTAMP)
    a("s_cmp_lt_u32 %s, 18" % sJ)
    a("s_cbranch_scc1 %s" % Lwork)
    a("s_sub_u32 %s, %s, 18" % (sT0, sJ))
    a("s_mul_i32 %s, %s, 14" % (sT1, sW))
    a("s_add_u32 %s, %s, %s" % (sST[1], sT0, sT1))
    a("v_lshlrev_b32 v%d, 7, v%d" % (T[8], L))
    a("s_lshl_b32 %s, %s, 13" % (sST[2], sST[1]))
    a("s_add_u32 %s, %s, %d" % (sT0, sST[2], 2 * NOWN * 36864))
    a("s_waitcnt lgkmcnt(0)")
    a("buffer_load_dword v%d, v%d, %s, %s offen" % (D, T[8], srd("w1"), sT0))
    a("s_branch %s" % Lhelp)

    def common_setup():
        for n in ("ws", "w2", "w3", "w4", "out", "dbg"):
            a("s_mov_b32 s%d, %d" % (SRD[n] + 2, SIZES[n]))
            a("s_mov_b32 s%d, 0x20000" % (SRD[n] + 3))
        a("v_lshlrev_b32 v%d, 4, v%d" % (g.vL16, L))
        a("s_lshr_b32 %s, %s, 2" % (sM, sJ))
        a("s_and_b32 %s, %s, 3" % (sQ, sJ))
        a("s_mul_i32 %s, %s, 4608" % (sWB, sW))
        a("s_lshl_b32 %s, %s, %d" % (sT0, sM, FLS))
        a("s_lshl_b32 %s, %s, %d" % (sT1, sK, FLS))
        a("v_mov_b32 v%d, %s" % (T[0], sT0))
        a("v_mov_b32 v%d, %s" % (T[1], sT1))
        a.vmem("buffer_load_dword v%d, v%d, %s, 0 offen sc1" % (g.vEP, T[0], srd("ws")), "ep")
        a.vmem("buffer_load_dword v%d, v%d, %s, 0 offen sc1" % (g.vEP + 1, T[1], srd("ws")), "ep")

    def setup2():
        a("s_lshl_b32 %s, %s, 3" % (sWG, sJ))
        a("s_add_u32 %s, %s, %s" % (sWG, sWG, sK))
        a("s_getreg_b32 %s, hwreg(HW_REG_XCC_ID)" % sXCC)
        a("s_and_b32 %s, %s, 7" % (sXCC, sXCC))
        a("s_cmp_eq_u32 %s, 0" % sW)
        a("s_cselect_b32 s74, 1, 0")
        a("s_mov_b32 s75, 0")
        a("s_mov_b32 s72, %s" % f2h(-K1))
        a("s_mov_b32 s73, %s" % f2h(-K1))
        a("v_mov_b32 v%d, %s" % (g.vK0, f2h(-K0)))
        a("v_mov_b32 v%d, %s" % (g.vK0 + 1, f2h(-K0)))
        for i in range(4):
            a("v_mov_b32 v%d, 0x3f803f80" % (g.vONES + i))

    def epochs():
        a.wait_vm("ep")
        a("v_readfirstlane_b32 %s, v%d" % (sNM, g.vEP))
        a("v_readfirstlane_b32 %s, v%d" % (sNK, g.vEP + 1))
        a("s_add_u32 %s, %s, 1" % (sNM, sNM))
        a("s_add_u32 %s, %s, 1" % (sNK, sNK))

    def wbig_setup():
        t0, t1, t2 = T[:3]
        a("s_and_b32 %s, %s, 1" % (sT0, sW))
        a("s_lshl_b32 %s, %s, 2" % (sT0, sT0))
        a("s_lshr_b32 %s, %s, 1" % (sT1, sW))
        a("s_lshl_b32 %s, %s, 5" % (sT1, sT1))
        a("s_add_u32 %s, %s, %s" % (sT0, sT0, sT1))
        a("s_mul_i32 %s, %s, 288" % (sT2, sQ))
        a("s_mul_i32 %s, %s, 1152" % (sT1, sK))
        a("s_add_u32 %s, %s, %s" % (sT1, sT1, sT2))
        a("s_mul_i32 %s, %s, 9216" % (sW3B, sT0))
        a("s_add_u32 %s, %s, %s" % (sW3B, sW3B, sT1))
        a("s_mul_i32 %s, %s, %d" % (sT1, sK, 576 * 1152))
        a("s_add_u32 %s, %s, %s" % (sT1, sT1, sT2))
        a("s_mul_i32 %s, %s, %d" % (sW49, sW, 144 * 1152))
        a("s_add_u32 %s, %s, %s" % (sW49, sW49, sT1))
        a("s_add_u32 %s, %s, %d" % (sW49, sW49, 128 * 1152))
        a("s_mul_i32 %s, %s, %d" % (sT0, sW, 16 * 1152))
        a("s_add_u32 %s, %s, %s" % (sT1, sT1, sT0))
        for i in range(4):
            a("s_add_u32 %s, %s, %d" % (sT0, sQ, i))
            a("s_and_b32 %s, %s, 3" % (sT0, sT0))
            a("s_mul_i32 %s, %s, %d" % (sT0, sT0, 144 * 1152))
            a("s_add_u32 %s, %s, %s" % (sW4C[i], sT0, sT1))
        a("s_mov_b32 %s, -288" % sT0)
        a("s_movk_i32 %s, 9216" % sT1)
        a("s_movk_i32 %s, 1152" % sT2)
        a("v_mul_u32_u24 v%d, 3641, v%d" % (t2, L))
        for i in range(5):
            u0 = 0 if i == 0 else 32 + 64 * (i - 1)
            if i:
                a("v_add_u32 v%d, %d, v%d" % (t1, u0 * 3641, t2))
            a("v_lshrrev_b32 v%d, 16, v%d" % (t1, t1 if i else t2))
            a("v_mad_i32_i24 v%d, v%d, %s, v%d" % (t0, t1, sT0, g.vL16))
            a("v_mad_u32_u24 v%d, v%d, %s, v%d" % (g.vWB + 5 + i, t1, sT2, t0))
            a("v_and_b32 v%d, 12, v%d" % (g.vWB + i, t1))
            a("v_add_u32 v%d, v%d, v%d" % (t1, t1, g.vWB + i))
            a("v_mad_u32_u24 v%d, v%d, %s, v%d" % (g.vWB + i, t1, sT1, t0))
        a("v_lshrrev_b32 v%d, 2, v%d" % (t0, L))
        a("v_mul_u32_u24 v%d, 288, v%d" % (t0, t0))
        a("v_and_b32 v%d, 3, v%d" % (t1, L))
        a("v_lshl_add_u32 v%d, v%d, 3, v%d" % (t0, t1, t0))
        a("s_lshl_b32 %s, %s, 6" % (sT0, sW))
        a("v_add_u32 v%d, %s, v%d" % (g.vTRB, sT0, t0))
        a("v_add_u32 v%d, 256, v%d" % (g.vTRB + 3, t0))
        for i in (1, 2):
            a("v_add_u32 v%d, %d, v%d" % (g.vTRB + i, 3 * SLOT * i, g.vTRB))
            a("v_add_u32 v%d, %d, v%d" % (g.vTRB + 3 + i, 3 * SLOT * i, g.vTRB + 3))

    def mlp_setup():
        a("v_and_b32 v%d, 15, v%d" % (T[2], L))
        a("v_lshlrev_b32 v%d, 3, v%d" % (T[2], T[2]))
        for i in range(4):
            a("s_add_u32 %s, %s, %d" % (sT0, sW, i))
            a("s_and_b32 %s, %s, 3" % (sT0, sT0))
            a("s_lshl_b32 %s, %s, 10" % (sT1, sT0))
            a("v_add_u32 v%d, %s, v%d" % (g.vXA + i, sT1, g.vL16))
            a("v_add_u32 v%d, 0x10000, v%d" % (g.vXA + 4 + i, g.vXA + i))
            a("s_lshl_b32 %s, %s, 7" % (sT1, sT0))
            a("s_add_u32 %s, %s, %d" % (sT1, sT1, LST))
            a("v_add_u32 v%d, %s, v%d" % (g.vSA + i, sT1, T[2]))
        a("s_lshl_b32 %s, %s, 3" % (sH2A, sK))
        a("s_add_u32 %s, %s, %s" % (sH2A, sH2A, sM))
        a("s_mul_i32 %s, %s, 73728" % (sH2A, sH2A))
        a("s_add_u32 %s, %s, %d" % (sH2A, sH2A, H2A))
        a("s_mul_i32 %s, %s, 144" % (sT0, sQ))
        a("s_lshl_b32 %s, %s, 5" % (sT1, sW))
        a("s_add_u32 %s, %s, %s" % (sT1, sT1, sT0))
        a("s_add_u32 %s, %s, 128" % (sT0, sT0))
        a("s_lshr_b32 %s, %s, 1" % (sT2, sK))
        a("s_lshl_b32 %s, %s, 10" % (sT2, sT2))
        a("s_and_b32 %s, %s, 1" % (sT3, sK))
        a("s_lshl_b32 %s, %s, 7" % (sT3, sT3))
        a("s_add_u32 %s, %s, %s" % (sT2, sT2, sT3))
        a("v_and_b32 v%d, 7, v%d" % (T[3], L))
        for i in range(2):
            if i == 0:
                a("v_lshrrev_b32 v%d, 3, v%d" % (T[0], L))
                a("v_lshl_add_u32 v%d, v%d, 2, %s" % (T[0], T[0], sT1))
            else:
                a("v_bfe_u32 v%d, v%d, 3, 2" % (T[0], L))
                a("v_lshl_add_u32 v%d, v%d, 2, %s" % (T[0], T[0], sT0))
                a("v_lshrrev_b32 v%d, 5, v%d" % (T[1], L))
                a("v_lshl_add_u32 v%d, v%d, 1, v%d" % (T[0], T[1], T[0]))
            a("v_mul_u32_u24 v%d, 1152, v%d" % (T[1], T[3]))
            a("v_lshl_add_u32 v%d, v%d, 1, v%d" % (g.vOA + i, T[0], T[1]))
            a("v_lshrrev_b32 v%d, 5, v%d" % (T[1], T[0]))
            a("v_lshlrev_b32 v%d, 12, v%d" % (T[1], T[1]))
            a("v_bfe_u32 v%d, v%d, 3, 2" % (T[2], T[0]))
            a("v_lshl_add_u32 v%d, v%d, 8, v%d" % (T[1], T[2], T[1]))
            a("v_and_b32 v%d, 7, v%d" % (T[2], T[0]))
            a("v_lshl_add_u32 v%d, v%d, 1, v%d" % (T[1], T[2], T[1]))
            a("v_lshl_add_u32 v%d, v%d, 4, v%d" % (T[1], T[3], T[1]))
            a("v_add_u32 v%d, %s, v%d" % (g.vRA + i, sT2, T[1]))

    a(Lwork + ":")
    a("s_cmp_ge_u32 %s, 9" % sJ)
    a("s_cselect_b32 %s, 1, 0" % sBL)
    a("s_mul_i32 %s, %s, 9" % (sST[2], sBL))
    a("s_sub_u32 %s, %s, %s" % (sCB, sJ, sST[2]))
    a("s_mul_i32 %s, %s, %d" % (sST[0], sBL, NOWN))
    a("s_lshl_b32 %s, %s, 1" % (sT0, sK))
    a("s_add_u32 %s, %s, %s" % (sT0, sT0, sBL))
    a("s_mul_i32 %s, %s, 36864" % (sBAT, sT0))
    a("s_lshl_b32 %s, %s, 3" % (sT1, sW))
    a("v_lshrrev_b32 v%d, 3, v%d" % (T[0], L))
    a("v_add_u32 v%d, %s, v%d" % (T[0], sT1, T[0]))
    a("v_bfe_u32 v%d, v%d, 1, 3" % (T[1], T[0]))
    a("v_and_b32 v%d, 7, v%d" % (T[2], L))
    a("v_xor_b32 v%d, v%d, v%d" % (T[1], T[1], T[2]))
    a("v_mul_u32_u24 v%d, 1152, v%d" % (T[3], T[0]))
    a("v_lshl_add_u32 v%d, v%d, 4, v%d" % (g.vXD, T[1], T[3]))
    a("s_and_b32 %s, %s, 1" % (sT1, sW))
    a("s_lshl_b32 %s, %s, 2" % (sT1, sT1))
    a("v_lshrrev_b32 v%d, 3, v%d" % (T[1], L))
    a("v_and_b32 v%d, 2, v%d" % (T[1], T[1]))
    a("v_or_b32 v%d, %s, v%d" % (T[1], sT1, T[1]))
    a("v_xor_b32 v%d, v%d, v%d" % (T[1], T[1], T[2]))
    a("v_lshl_add_u32 v%d, v%d, 4, v%d" % (T[1], T[1], T[3]))
    a("s_lshl_b32 %s, %s, 7" % (sT1, sCB))
    a("v_add_u32 v%d, %s, v%d" % (g.vW12, sT1, T[1]))
    a("s_lshl_b32 %s, %s, 12" % (sT0, sCB))
    a("s_add_u32 m0, %s, %s" % (sT0, sW10))
    a("s_add_u32 %s, %s, %s" % (sT2, sT1, sBAT))
    a("s_waitcnt lgkmcnt(0)")
    g.stamp(0)
    a.vmem("buffer_load_dwordx4 v%d, %s, %s offen lds" % (g.vXD, srd("x"), sT2), "x")
    q_w12(g, "w1", sST[0], NOWN, LB, "w1a")
    g.burst()
    a("s_sub_u32 %s, %d, %s" % (sST[0], NOWN, sST[0]))
    a("s_sub_u32 %s, 9, %s" % (sST[3], sST[2]))
    common_setup()
    g.q.append(I("s_mov_b32 m0, %s" % sW10))
    for kb in range(9):
        g.q.append(VM("buffer_load_dwordx4 v%d, %s, %s offen offset:%d lds" % (g.vXD, srd("x"), sBAT, kb * 128), "x"))
        if kb < 8:
            g.q.append(I("s_add_u32 m0, m0, %d" % (4096 - 128)))
    q_w12(g, "w1", sST[0], NOWN, LB, "w1a")

    def p_setup():
        setup2()
        a("v_lshrrev_b32 v%d, 4, v%d" % (T[0], L))
        a("v_bfe_u32 v%d, v%d, 2, 2" % (T[1], L))
        a("v_lshl_add_u32 v%d, v%d, 3, v%d" % (T[0], T[0], T[1]))
        a("v_bfe_u32 v%d, v%d, 3, 2" % (T[1], L))
        a("v_xor_b32 v%d, %s, v%d" % (T[1], sW, T[1]))
        a("v_lshlrev_b32 v%d, 5, v%d" % (T[1], T[1]))
        a("v_lshl_add_u32 v%d, v%d, 7, v%d" % (T[0], T[0], T[1]))
        a("v_and_b32 v%d, 3, v%d" % (T[1], L))
        a("v_lshl_add_u32 v%d, v%d, 3, v%d" % (T[0], T[1], T[0]))
        a("v_add_u32 v%d, %d, v%d" % (g.vTR12, LA2, T[0]))
        a("v_add_u32 v%d, %d, v%d" % (g.vTR12 + 1, LB, T[0]))
        a("v_add_u32 v%d, %d, v%d" % (g.vTR12 + 2, LB + 36864, T[0]))
        a("v_and_b32 v%d, 15, v%d" % (T[0], L))
        a("v_bfe_u32 v%d, v%d, 1, 3" % (T[1], L))
        a("v_lshrrev_b32 v%d, 4, v%d" % (T[2], L))
        a("v_xor_b32 v%d, v%d, v%d" % (T[1], T[1], T[2]))
        a("v_lshlrev_b32 v%d, 4, v%d" % (T[1], T[1]))
        a("v_lshl_add_u32 v%d, v%d, 7, v%d" % (g.vXR, T[0], T[1]))
        a("v_xor_b32 v%d, 64, v%d" % (g.vXR + 1, g.vXR))
        a("s_lshl_b32 %s, %s, 2" % (sT0, sCB))
        a("s_add_u32 %s, %s, %s" % (sT0, sT0, sW))
        a("s_mov_b32 %s, 1" % sT1)
        a("s_cmp_ge_u32 %s, 9" % sT0)
        a("s_cselect_b32 %s, -1, %s" % (sT1, sT1))
        a("s_cmp_ge_u32 %s, 18" % sT0)
        a("s_cselect_b32 %s, 2, %s" % (sT1, sT1))
        a("s_cmp_ge_u32 %s, 27" % sT0)
        a("s_cselect_b32 %s, -2, %s" % (sT1, sT1))
        a("v_and_b32 v%d, 31, v%d" % (T[0], L))
        a("v_add_u32 v%d, %s, v%d" % (T[0], sT1, T[0]))
        a("v_cmp_gt_u32 %s, 32, v%d" % (sSHM, T[0]))
        a("v_and_b32 v%d, 15, v%d" % (T[1], T[0]))
        a("v_bfe_u32 v%d, v%d, 4, 1" % (T[0], T[0]))
        a("v_lshlrev_b32 v%d, 10, v%d" % (T[0], T[0]))
        a("v_lshl_add_u32 v%d, v%d, 4, v%d" % (T[0], T[1], T[0]))
        a("v_lshrrev_b32 v%d, 5, v%d" % (T[1], L))
        a("v_lshl_add_u32 v%d, v%d, 8, v%d" % (T[9], T[1], T[0]))
        a("v_and_b32 v%d, 15, v%d" % (T[2], L))
        a("v_bfe_u32 v%d, v%d, 4, 1" % (T[0], L))
        a("v_lshlrev_b32 v%d, 10, v%d" % (T[0], T[0]))
        a("v_lshl_add_u32 v%d, v%d, 4, v%d" % (T[0], T[2], T[0]))
        a("v_lshl_add_u32 v%d, v%d, 8, v%d" % (T[10], T[1], T[0]))
        a("s_lshr_b32 %s, %s, 1" % (sT1, sT0))
        a("s_and_b32 %s, %s, 1" % (sT2, sT0))
        a("s_lshl_b32 %s, %s, 9" % (sT2, sT2))
        a("s_add_u32 %s, %s, %s" % (sU0, sST[2], sT1))
        a("s_sub_u32 %s, %s, 18" % (sU1, sU0))
        a("s_cmp_ge_u32 %s, 18" % sU0)
        a("s_cselect_b32 %s, %s, %s" % (sU0, sU1, sU0))
        a("s_lshl_b32 %s, %s, 11" % (sHSO, sU0))
        a("s_add_u32 %s, %s, %s" % (sHSO, sHSO, sT2))
        a("s_add_u32 %s, %s, %s" % (sHSO, sHSO, sBAT))
        a("s_add_u32 %s, %s, %d" % (sHSO, sHSO, HS))
        a("s_lshl_b32 %s, %s, 12" % (sX1O, sT1))
        a("s_add_u32 %s, %s, %s" % (sX1O, sX1O, sT2))
        a("s_lshl_b32 %s, %s, 11" % (sT2, sBL))
        a("s_add_u32 %s, %s, %s" % (sX1O, sX1O, sT2))
        a("s_mul_i32 %s, %s, 73728" % (sT2, sK))
        a("s_add_u32 %s, %s, %s" % (sX1O, sX1O, sT2))
        a("s_add_u32 %s, %s, %d" % (sX1O, sX1O, X1))
        a("v_and_b32 v%d, 15, v%d" % (T[4], L))
        a("v_bfe_u32 v%d, v%d, 1, 3" % (T[5], L))
        a("v_lshrrev_b32 v%d, 5, v%d" % (T[6], L))
        a("s_lshl_b32 %s, %s, 1" % (sT0, sW))
        a("v_add_u32 v%d, %s, v%d" % (T[6], sT0, T[6]))
        a("v_xor_b32 v%d, v%d, v%d" % (T[5], T[5], T[6]))
        a("v_lshlrev_b32 v%d, 4, v%d" % (T[5], T[5]))
        a("v_lshl_add_u32 v%d, v%d, 7, v%d" % (T[4], T[4], T[5]))
        a("v_bfe_u32 v%d, v%d, 4, 1" % (T[5], L))
        a("v_lshl_add_u32 v%d, v%d, 3, v%d" % (T[4], T[5], T[4]))
        a("s_lshl_b32 %s, %s, 12" % (sT0, sCB))
        a("v_add_u32 v%d, %s, v%d" % (T[11], sT0, T[4]))
        wbig_setup()
        a("v_and_b32 v%d, 0x38, v%d" % (T[8], L))
        a("s_lshl_b32 %s, %s, 6" % (sT0, sW))
        a("s_add_u32 %s, %s, %d" % (sT0, sT0, LST))
        a("v_add_u32 v%d, %s, v%d" % (T[8], sT0, T[8]))
        a("v_add_u32 v%d, %s, v%d" % (T[0], sW10, g.vL16))
        for i in range(4):
            a("v_mov_b32 v%d, 0" % (T[4 + i]))
    g.clk = -g.opt("r2wait", 0)
    gap, g.gap = g.gap, g.opt("r2gap", 48)
    g.weave(g.capture(p_setup))
    g.stamp(31)
    g.burst()
    q_w12(g, "w1", 2 * NOWN, 18 - 2 * NOWN, LB, "w1b")
    g.stamp(26)
    a.wait_vm("x")
    g.stamp(27)
    for kb in range(9):
        a.lds("ds_read_b128 %s, v%d offset:%d" % (vr(g.vXF + 4 * kb, 4), T[0], LA + kb * 4096), ("st", kb))
    g.burst(2)
    g.gap = 32
    for kb in range(9):
        a.wait_lg(("st", kb))
        for i in range(4 * kb, 4 * kb + 4):
            a("v_dot2c_f32_bf16 v%d, v%d, v%d" % (T[4 + (i & 1)], g.vXF + i, g.vONES))
            a("v_dot2c_f32_bf16 v%d, v%d, v%d" % (T[6 + (i & 1)], g.vXF + i, g.vXF + i))
        g.fill_vm(3, 32)
    g.burst()
    g.gap = gap
    a("v_and_b32 v%d, 15, v%d" % (T[0], L))
    a("v_lshlrev_b32 v%d, 3, v%d" % (T[0], T[0]))
    a("v_add_u32 v%d, %d, v%d" % (T[0], LST, T[0]))
    a("v_add_f32 v%d, v%d, v%d" % (g.vAB, T[4], T[5]))
    a("v_add_f32 v%d, v%d, v%d" % (g.vAB + 1, T[6], T[7]))
    g.stamp(28)
    sync(g, ["w1a"])
    g.stamp(1)

    def gemm_small(xaddr, waddr, withcs, gates):
        AH = 3

        def rd(t, part):
            if t >= 18:
                return
            if part == 0:
                if t in gates:
                    sync(g, gates[t][0])
                    if gates[t][1]:
                        gates[t][1]()
                if waddr(t) is not None:
                    for f in tr12(g, t, waddr(t)):
                        a.lds(f[0][1], ("xs", t))
                    return
            for mt in ((0, 1) if waddr(t) is not None else (part,)):
                base, off = xaddr(t, mt)
                a.lds("ds_read_b128 %s, v%d offset:%d" % (vr(g.vXF + 8 * (t % 6) + 4 * mt, 4), base, off), ("xs", t))
        for t in range(AH):
            rd(t, 0)
            rd(t, 1)
        for t in range(18):
            w = vr(g.vWF + 4 * t, 4)
            a.wait_lg(("xs", t))
            g.fine("p%d_%d" % (1 if withcs else 2, t))
            for mt in range(2):
                d = vr(acc + 4 * mt, 4)
                a("%s %s, %s, %s, %s" % (MFMA, d, w, vr(g.vXF + 8 * (t % 6) + 4 * mt, 4), d if t else "0"))
                if t + AH >= 18:
                    g.mgap(n=2 if withcs or mt == 0 else 1)
                elif withcs:
                    g.mgap([lambda: rd(t + AH, mt)], n=1, cyc=20)
                else:
                    g.mgap([lambda: rd(t + AH, mt)], n=2 - mt)
            if withcs:
                d = vr(cs, 4)
                a("%s %s, %s, %s, %s" % (MFMA, d, w, vr(g.vONES, 4), d if t else "0"))
                g.mgap(n=2)

    def chain():
        for mod in ("quad_perm:[1,0,3,2]", "quad_perm:[2,3,0,1]", "row_half_mirror"):
            a("v_add_f32_dpp v%d, v%d, v%d %s row_mask:0xf bank_mask:0xf" % (g.vAB, g.vAB, g.vAB, mod))
            a("v_add_f32_dpp v%d, v%d, v%d %s row_mask:0xf bank_mask:0xf" % (g.vAB + 1, g.vAB + 1, g.vAB + 1, mod))
        ln_scalars(g, g.vAB, g.vAB + 1, T[6])
        epochs()
    g.q3 = g.capture(chain)
    q_w12(g, "w2", sST[2], 9, LA2, "w2", fixed=True)
    a.lds("ds_read_b64 %s, v%d offset:%d" % (vr(g.vAB + 4, 2), T[11], LA), "res")
    a.lds("ds_read_b64 %s, v%d offset:%d" % (vr(g.vAB + 6, 2), T[11], LA + 2048), "res")
    g.gap = g.opt("p1gap", 56)
    g.clk = g.gap - g.opt("p1wait", 0)
    last = []

    def w2b():
        if "w2in" in opts:
            q_w12(g, "w2", sST[3], 9, LB, "w2b", fixed=True)
            last.append(g.q.pop())
    assert 2 * NOWN == 10
    gemm_small(lambda t, mt: (g.vXR + (t & 1), LA + (t >> 1) * 4096 + mt * 2048), lambda t: LB + 4096 * t, True,
               {2 * NOWN: (["w1b"], w2b)})
    g.gap = gap
    g.fill_alu(100)
    a.lds("ds_write_b64 v%d, %s" % (T[8], vr(g.vAB, 2)), "stw")
    g.burst()
    a.wait_lg()
    a("s_barrier")
    a.lds("ds_read_b64 %s, v%d" % (vr(g.vAB, 2), T[0]), "ab")
    a.lds("ds_read_b64 %s, v%d offset:128" % (vr(g.vAB + 2, 2), T[0]), "ab")
    if last:
        g.emit(last[0])
    a.wait_lg()
    g.stamp(24)
    for mt in range(2):
        ln_fix(g, acc + 4 * mt, g.vAB + 2 * mt, cs)
    gelu_pk(g, [acc, acc + 2, acc + 4, acc + 6], g.vXF)
    P = g.vXF + 8
    for mt in range(2):
        for h in range(2):
            a("v_cvt_pk_bf16_f32 v%d, v%d, v%d" % (P + 2 * mt + h, acc + 4 * mt + 2 * h, acc + 4 * mt + 2 * h + 1))
    a("v_permlane16_swap_b32 v%d, v%d" % (P, P + 2))
    a("v_permlane16_swap_b32 v%d, v%d" % (P + 1, P + 3))
    for i in range(4):
        a("v_cndmask_b32 v%d, 0, v%d, %s" % (P + i, P + i, sSHM))
    a.vmem("buffer_store_dwordx4 %s, v%d, %s, %s offen" % (vr(P, 4), T[9], srd("ws"), sHSO), "hs")
    g.stamp(2)
    if last:
        q_stage(g, "w3", 0, 6)
        q_stage(g, "w3", 1, 7)
    else:
        q_w12(g, "w2", sST[3], 9, LB, "w2b", fixed=True)
    g.burst(g.opt("s01a", 5))
    a("s_mul_i32 %s, %s, 72" % (sT2, sBL))
    a("s_add_u32 %s, %s, %s" % (sT2, sT2, sK))
    a("s_lshl_b32 %s, %s, %d" % (sU0, sK, FLS))
    a("s_mul_i32 %s, %s, %d" % (sT1, sBL, 9 * 128))
    a("s_add_u32 %s, %s, %s" % (sU0, sU0, sT1))
    a("s_add_u32 %s, %s, %d" % (sU0, sU0, FL + FL_G1))
    a("s_add_u32 %s, %s, %d" % (sU1, sBAT, HS))
    a("v_add_u32 v%d, %d, v%d" % (T[8], LA2, g.vL16))
    signal_local(g, 0x10, "hs")
    g.stamp(25)
    g.burst(g.opt("s01b", 5))
    hold, g.q = g.q, []
    for t in range(18 if last else 9):
        g.q2 += tr12(g, t, LA2 + 4096 * t)
    g.fill_lds(100)
    a.wait_vm("w2b")
    a.wait_lg()
    wait_local(g, 0x10, 9, sT2, sU0, sCB, sNK)
    g.stamp(3)

    assert not hold
    q_linear(g, LA2, sU1, 9, "hsl")
    g.burst()
    a("s_lshl_b32 %s, %s, %d" % (sU0, sK, FLS))
    a("s_lshl_b32 %s, %s, 9" % (sT0, sJ))
    a("s_add_u32 %s, %s, %s" % (sU0, sU0, sT0))
    a("s_add_u32 %s, %s, %d" % (sU0, sU0, FL + FL_F2))
    a("v_and_b32 v%d, 31, v%d" % (T[9], L))
    a("v_lshlrev_b32 v%d, 3, v%d" % (T[9], T[9]))
    a("v_add_u32 v%d, %d, v%d" % (T[9], LPS, T[9]))
    a("s_lshl_b32 %s, %s, 8" % (sT0, sW))
    a("v_add_u32 v%d, %s, v%d" % (T[11], sT0, T[9]))
    if last:
        order = [(2, 0), (3, 1), (4, 4), (5, 5)]
    else:
        for t in range(9, 18):
            g.q2 += tr12(g, t, LA2 + 4096 * t)
        g.fill_lds(100)
        order = [(0, 6), (1, 7), (2, 0), (3, 1), (4, 4), (5, 5)]
    for st_, slot in order[:2]:
        q_stage(g, "w3", st_, slot)
    sync(g, [("hsl", 3)], "all")
    g.stamp(4)
    g.gap, g.extra, extra = g.opt("p2gap", 48), 0, g.extra
    g.clk = g.gap
    g.any3 = True
    gemm_small(lambda t, mt: (T[8], t * 2048 + mt * 1024), lambda t: None, False, {8: ([("hsl", 8)], None)})
    g.any3 = False
    g.gap, g.extra = gap, extra
    for mt in range(2):
        for h in range(2):
            p = P + 2 * mt + h
            x = g.vAB + 4 + 2 * mt + h
            u = g.vXF + 16 + 4 * (2 * mt + h)
            a("v_cvt_pk_bf16_f32 v%d, v%d, v%d" % (p, acc + 4 * mt + 2 * h, acc + 4 * mt + 2 * h + 1))
            a("v_lshlrev_b32 v%d, 16, v%d" % (u, x))
            a("v_and_b32 v%d, 0xffff0000, v%d" % (u + 1, x))
            a("v_lshlrev_b32 v%d, 16, v%d" % (u + 2, p))
            a("v_and_b32 v%d, 0xffff0000, v%d" % (u + 3, p))
            a("v_pk_add_f32 %s, %s, %s" % (vr(u, 2), vr(u, 2), vr(u + 2, 2)))
            a("v_cvt_pk_bf16_f32 v%d, v%d, v%d" % (p, u, u + 1))
    a("v_permlane16_swap_b32 v%d, v%d" % (P, P + 2))
    a("v_permlane16_swap_b32 v%d, v%d" % (P + 1, P + 3))
    a.vmem("buffer_store_dwordx4 %s, v%d, %s, %s offen sc1" % (vr(P, 4), T[10], srd("ws"), sX1O), "x1")
    g.stamp(5)
    S = g.vAB
    for i in range(4):
        a("v_mov_b32 v%d, 0" % (S + i))
    for i in range(4):
        a("v_dot2c_f32_bf16 v%d, v%d, v%d" % (S, P + i, g.vONES))
        a("v_dot2c_f32_bf16 v%d, v%d, v%d" % (S + 1, P + i, P + i))
    a("v_permlane32_swap_b32 v%d, v%d" % (S, S + 2))
    a("v_permlane32_swap_b32 v%d, v%d" % (S + 1, S + 3))
    a("v_pk_add_f32 %s, %s, %s" % (vr(S, 2), vr(S, 2), vr(S + 2, 2)))
    a("s_mov_b32 exec_hi, 0")
    a.lds("ds_write_b64 v%d, %s" % (T[11], vr(S, 2)), "ps")
    a("s_mov_b32 exec_hi, -1")
    for st_, slot in order[2:]:
        q_stage(g, "w3", st_, slot)
    g.burst(g.opt("x1dma", 8))
    if last:
        for s in (0, 1):
            q_tr(g, "w3", s)
        g.fill_lds(100)
    sync(g, ["x1"], "all")
    Lf = a.label("f2")
    a("s_cmp_lg_u32 %s, 0" % sW)
    a("s_cbranch_scc1 %s" % Lf)
    for i in range(4):
        a("ds_read_b64 %s, v%d offset:%d" % (vr(g.vXF + 2 * i, 2), T[9], 256 * i))
    a("v_mov_b32 v%d, %s" % (S, sNK))
    a("v_mov_b32 v%d, %s" % (S + 3, sNK))
    a("s_waitcnt lgkmcnt(0)")
    a("v_pk_add_f32 %s, %s, %s" % (vr(g.vXF, 2), vr(g.vXF, 2), vr(g.vXF + 2, 2)))
    a("v_pk_add_f32 %s, %s, %s" % (vr(g.vXF + 4, 2), vr(g.vXF + 4, 2), vr(g.vXF + 6, 2)))
    a("v_add_f32 v%d, v%d, v%d" % (S + 1, g.vXF, g.vXF + 4))
    a("v_add_f32 v%d, v%d, v%d" % (S + 2, g.vXF + 1, g.vXF + 5))
    a("s_mov_b32 exec_hi, 0")
    a("buffer_store_dwordx4 %s, v%d, %s, %s offen sc1" % (vr(S, 4), g.vL16, srd("ws"), sU0))
    a("s_mov_b32 exec_hi, -1")
    a(Lf + ":")
    g.stamp(20)
    for s, slot in ((6, 2), (7, 3)):
        q_stage(g, "w3", s, slot)
    if last:
        q_stage(g, "w3", 8, 6)
    g.gap, g.extra, extra = 32, 0, g.extra
    g.clk = g.gap
    g.weave(g.capture(mlp_setup))
    if last:
        force_issue(g, [("w3", 6)])
        groups = [[2, 3], [4, 5], [6, 7], [8]]
        done = [0, 1]
    else:
        force_issue(g, [("w3", 4)])
        groups = [[0, 1], [2, 3], [4, 5], [6, 7], [8]]
        done = []
    for n, grp in enumerate(groups):
        sync(g, [("w3", grp[-1])], "all")
        g.stamp(21 + min(n, 2))
        if n == 1 and not last:
            q_stage(g, "w3", 8, 6)
        for s in grp:
            q_tr(g, "w3", s)
        colsum(g, done)
        g.fill_lds(100)
        g.burst(10)
        done = grp
    colsum(g, done)
    g.gap, g.extra = gap, extra
    a("s_branch %s" % Lmlp)

    a(Lhelp + ":")
    a.vm = []
    a.lg = []
    g.stamp(0)
    common_setup()
    setup2()
    wbig_setup()
    mlp_setup()
    a("s_add_u32 %s, %s, %d" % (sST[3], sST[2], 56 * 8192))
    for h in range(2):
        a("s_lshl_b32 %s, %s, 6" % (sT3, sST[1]))
        if h:
            a("s_add_u32 %s, %s, 3584" % (sT3, sT3))
        a("v_add_u32 v%d, %s, v%d" % (T[0], sT3, L))
        a("v_mul_u32_u24 v%d, 7282, v%d" % (T[1], T[0]))
        a("v_lshrrev_b32 v%d, 16, v%d" % (T[1], T[1]))
        a("v_mul_u32_u24 v%d, 9, v%d" % (T[2], T[1]))
        a("v_sub_u32 v%d, v%d, v%d" % (T[0], T[0], T[2]))
        a("v_mul_u32_u24 v%d, 9216, v%d" % (T[1], T[1]))
        a("v_lshl_add_u32 v%d, v%d, 7, v%d" % (T[10 + h], T[0], T[1]))
    a("s_mul_i32 %s, %s, 1152" % (sT3, sK))
    a("s_mul_i32 %s, %s, 73728" % (sU0, sK))
    a("s_add_u32 %s, %s, %s" % (sU0, sU0, sST[2]))
    a("s_add_u32 %s, %s, %d" % (sU0, sU0, HS - 47 * 8192))
    a("s_cmp_ge_u32 %s, 47" % sST[1])
    a("s_cselect_b32 %s, %s, 0x7fffffff" % (sU0, sU0))
    epochs()
    g.stamp(1)
    if "w2touch" in opts:
        a.vmem("buffer_load_dword v%d, v%d, %s, %s offen" % (D + 1, T[8], srd("w2"), sST[2]), "touch")
        a.vmem("buffer_load_dword v%d, v%d, %s, %s offen" % (D + 2, T[8], srd("w2"), sST[3]), "touch")
    a.vmem("buffer_load_dword v%d, v%d, %s, %s offen" % (D + 7, T[8], srd("ws"), sU0), "touch")
    a.vmem("buffer_load_dword v%d, v%d, %s, %s offen" % (D + 3, T[10], srd("w3"), sT3), "touch")
    a.vmem("buffer_load_dword v%d, v%d, %s, %s offen" % (D + 4, T[11], srd("w3"), sT3), "touch")
    for s in range(8):
        q_stage(g, "w3", s, s)
    g.burst(20)
    sync(g, [("w3", 1)])
    for s in (0, 1):
        q_tr(g, "w3", s)
    g.fill_lds(14)
    colsum(g, [0, 1])
    g.burst()
    sync(g, [("w3", 4)])
    q_stage(g, "w3", 8, 0)
    g.burst()
    for s in (2, 3, 4):
        q_tr(g, "w3", s)
    g.fill_lds(14)
    colsum(g, [2, 3, 4])
    sync(g, [("w3", 6)])
    for s in (5, 6):
        q_tr(g, "w3", s)
    g.fill_lds(14)
    colsum(g, [5, 6])
    sync(g, [("w3", 8)])
    if "w4help" in opts:
        a("s_mul_i32 %s, %s, %d" % (sT0, sK, 576 * 1152))
        a("s_add_u32 %s, %s, %s" % (sT1, sT0, sST[3]))
        a("s_add_u32 %s, %s, %s" % (sT0, sT0, sST[2]))
        a("s_cmp_lt_u32 %s, 25" % sST[1])
        a("s_cselect_b32 %s, %s, 0x7fffffff" % (sT1, sT1))
        a("buffer_load_dword v%d, v%d, %s, %s offen" % (D + 5, T[8], srd("w4"), sT0))
        a("buffer_load_dword v%d, v%d, %s, %s offen" % (D + 6, T[8], srd("w4"), sT1))
    for s in (7, 8):
        q_tr(g, "w3", s)
    g.fill_lds(14)
    colsum(g, [7, 8])

    a(Lmlp + ":")
    a.vm = []
    a.lg = []
    g.stamp(6)
    if "w4help" not in opts:
        a("s_lshl_b32 %s, %s, 2" % (sT0, sJ))
        a("s_add_u32 %s, %s, %s" % (sT0, sT0, sW))
        a("s_mul_i32 %s, %s, 41" % (sT0, sT0))
        a("v_min_u32 v%d, 40, v%d" % (T[0], L))
        a("v_add_u32 v%d, %s, v%d" % (T[0], sT0, T[0]))
        a("v_min_u32 v%d, 5183, v%d" % (T[0], T[0]))
        a("v_lshlrev_b32 v%d, 7, v%d" % (T[0], T[0]))
        a("s_mul_i32 %s, %s, %d" % (sT0, sK, 576 * 1152))
        a.vmem("buffer_load_dword v%d, v%d, %s, %s offen" % (g.vEP, T[0], srd("w4"), sT0), "touch")
    a("s_lshl_b32 %s, %s, %d" % (sU0, sM, FLS))
    a("s_add_u32 %s, %s, %d" % (sU0, sU0, FL + FL_F2))
    a("s_mul_i32 %s, %s, 73728" % (sU1, sM))
    a("s_add_u32 %s, %s, %d" % (sU1, sU1, X1))
    a("v_and_b32 v%d, 15, v%d" % (T[9], L))
    a("v_lshlrev_b32 v%d, 4, v%d" % (T[9], T[9]))
    a("v_lshrrev_b32 v%d, 4, v%d" % (T[8], L))
    a("v_lshl_add_u32 v%d, v%d, 9, v%d" % (T[8], T[8], T[9]))
    a("v_add_u32 v%d, 4096, v%d" % (T[9], T[9]))
    a("s_lshr_b32 %s, %s, 1" % (sT0, sW))
    a("s_mul_i32 %s, %s, %d" % (sT0, sT0, 9 * 512))
    a("s_and_b32 %s, %s, 1" % (sT1, sW))
    a("s_lshl_b32 %s, %s, 8" % (sT1, sT1))
    a("s_add_u32 %s, %s, %s" % (sT0, sT0, sT1))
    a("s_add_u32 %s, %s, %s" % (sHSO, sU0, sT0))
    Lp, Lpd = a.label("f2poll"), a.label("f2done")
    a("s_cmp_lg_u32 %s, 0" % sW)
    a("s_cbranch_scc1 %s" % Lpd)
    a("v_min_u32 v%d, 17, v%d" % (T[0], L))
    a("v_lshlrev_b32 v%d, 9, v%d" % (T[0], T[0]))
    a("s_mov_b32 %s, 0" % sCNT)
    a(Lp + ":")
    a("buffer_load_dword v%d, v%d, %s, %s offen sc1" % (T[1], T[0], srd("ws"), sU0))
    a("s_add_u32 %s, %s, 1" % (sCNT, sCNT))
    a("s_waitcnt vmcnt(0)")
    a("v_cmp_ne_u32 vcc, %s, v%d" % (sNM, T[1]))
    a("s_cbranch_vccz %s" % Lpd)
    if g.opt("sleep", 0):
        a("s_sleep %d" % g.opt("sleep", 0))
    a("s_cmp_lt_u32 %s, 0x20000" % sCNT)
    a("s_cbranch_scc1 %s" % Lp)
    a(Lpd + ":")
    a("s_barrier")
    g.stamp(7)
    q_linear(g, LA, sU1, 18, "x1l")
    g.burst(g.opt("x1pre", 8))
    R = g.vWF + 24

    def rec_loads(emit):
        emit("buffer_load_dwordx4 %s, v%d, %s, %s offen sc1" % (vr(R, 4), T[8], srd("ws"), sHSO))
        emit("buffer_load_dwordx4 %s, v%d, %s, %s offen offset:2048 sc1" % (vr(R + 4, 4), T[8], srd("ws"), sHSO))
        emit("buffer_load_dwordx4 %s, v%d, %s, %s offen sc1" % (vr(R + 8, 4), T[9], srd("ws"), sHSO))

    def rec_check():
        a("v_xor_b32 v%d, %s, v%d" % (T[10], sNM, R))
        for r in (R + 3, R + 4, R + 7, R + 8, R + 11):
            a("v_xor_b32 v%d, %s, v%d" % (T[3], sNM, r))
            a("v_or_b32 v%d, v%d, v%d" % (T[10], T[10], T[3]))

    def rec_stats():
        a("v_add_f32 v%d, v%d, v%d" % (S, R + 1, R + 5))
        a("v_add_f32 v%d, v%d, v%d" % (S + 1, R + 2, R + 6))
        for op in ("v_permlane32_swap_b32", "v_permlane16_swap_b32"):
            a("v_mov_b32 v%d, v%d" % (S + 2, S))
            a("v_mov_b32 v%d, v%d" % (S + 3, S + 1))
            a("%s v%d, v%d" % (op, S, S + 2))
            a("%s v%d, v%d" % (op, S + 1, S + 3))
            a("v_add_f32 v%d, v%d, v%d" % (S, S, S + 2))
            a("v_add_f32 v%d, v%d, v%d" % (S + 1, S + 1, S + 3))
        a("v_add_f32 v%d, v%d, v%d" % (S, S, R + 9))
        a("v_add_f32 v%d, v%d, v%d" % (S + 1, S + 1, R + 10))
        ln_scalars(g, S, S + 1, T[2])
    rec_loads(lambda t: g.q.append(VM(t, "rec")))
    for s in range(4):
        q_stage(g, "w4", s, 4 + s)
    a("s_mul_i32 %s, %s, 18432" % (sT0, sQ))
    a("s_add_u32 %s, %s, %s" % (sT0, sT0, sWB))
    a("s_add_u32 %s, %s, %s" % (sST[0], sT0, sH2A))
    a("v_min_u32 v%d, 35, v%d" % (T[4], L))
    a("v_lshlrev_b32 v%d, 7, v%d" % (T[4], T[4]))
    touch_h = VM("buffer_load_dword v%d, v%d, %s, %s offen" % (g.vEP, T[4], srd("ws"), sST[0]), "touch")
    if "tche" not in opts:
        g.q.append(touch_h)
    a("s_lshl_b32 %s, %s, 14" % (sST[1], sQ))
    a("s_lshl_b32 %s, %s, 12" % (sST[2], sW))
    a("s_add_u32 %s, %s, %s" % (sST[1], sST[1], sST[2]))
    a("s_add_u32 %s, %s, %s" % (sST[1], sST[1], sH2A))
    a("s_lshr_b32 %s, %s, 1" % (sT0, sQ))
    a("s_lshl_b32 %s, %s, 12" % (sT0, sT0))
    a("s_and_b32 %s, %s, 1" % (sT1, sQ))
    a("s_lshl_b32 %s, %s, 3" % (sT1, sT1))
    a("s_add_u32 %s, %s, %s" % (sT0, sT0, sT1))
    a("s_add_u32 %s, %s, %s" % (sST[3], sT0, sH2A))
    for i in range(4):
        a("v_add_u32 v%d, %s, v%d" % (g.vCA + i, sST[2], g.vXA + i))

    def rec_go():
        force_issue(g, ["rec"])
        a.wait_vm("rec")
        g.q3 += g.capture(rec_check) + g.capture(rec_stats)

    def tr01():
        q_tr(g, "w4", 0)
        q_tr(g, "w4", 1)
    sync(g, [("x1l", 2)])
    g.stamp(8)
    gemm_seq(g, acc, full(0, 18), {(1, 0): ([("x1l", 4)], None, None), (3, 0): ([("x1l", 7)], None, None),
                                   (6, 0): ([("x1l", 11)], None, None), (10, 0): ([("x1l", 17)], None, None),
                                   (11, 0): (None, None, rec_go),
                                   (g.opt("g01", 14), 0): ([("w4", 1)], None, tr01)}, False, "a")
    g.flush()
    Lrs, Lrd = a.label("recslow"), a.label("recdone")
    a("v_cmp_ne_u32 vcc, 0, v%d" % T[10])
    a("s_cbranch_vccnz %s" % Lrs)
    a(Lrd + ":")

    def rec_slow():
        Lr = a.label("recpoll")
        a(Lrs + ":")
        a("s_mov_b32 %s, 0" % sCNT)
        a(Lr + ":")
        rec_loads(a)
        a("s_add_u32 %s, %s, 1" % (sCNT, sCNT))
        a("s_waitcnt vmcnt(0)")
        rec_check()
        a("v_cmp_ne_u32 vcc, 0, v%d" % T[10])
        a("s_cmp_lt_u32 %s, 0x20000" % sCNT)
        a("s_cselect_b64 s[62:63], -1, 0")
        a("s_and_b64 vcc, vcc, s[62:63]")
        a("s_cbranch_vccnz %s" % Lr)
        rec_stats()
        a("s_branch %s" % Lrd)
    g.slow.append(rec_slow)
    RES = g.vWF + 64
    a.lds("ds_write_b64 v%d, %s" % (g.vSA, vr(S, 2)), "stw")
    a.lds("ds_read_b64 %s, v%d" % (vr(RES, 2), g.vRA), "res")
    a.lds("ds_read_b32 v%d, v%d" % (RES + 2, g.vRA + 1), "res")
    g.stamp(9)
    a.wait_lg()
    a("s_barrier")
    for i in range(1, 4):
        a.lds("ds_read_b64 %s, v%d" % (vr(g.vAB + 2 * i, 2), g.vSA + i), "ab")
    if "tche" in opts:
        g.q.append(touch_h)
    NE = g.opt("ne", 1)
    for s in range(4, 4 + NE):
        q_stage(g, "w4", s, s)
    g.burst(NE)
    P = g.vWF
    ln_fix(g, acc + 32, g.vAB, cs + 8)
    gelu_pk(g, [acc + 32, acc + 34], g.vXF)
    for h in range(2):
        a("v_cvt_pk_bf16_f32 v%d, v%d, v%d" % (P + 16 + h, acc + 32 + 2 * h, acc + 33 + 2 * h))
    a.vmem("buffer_store_dwordx2 %s, v%d, %s, %s offen" % (vr(P + 16, 2), g.vXA + 4, srd("ws"), sST[3]), "h2a")
    g.burst(NE)
    for i in range(4):
        if i:
            a.wait_lg("ab")
        for c in range(2):
            ln_fix(g, acc + 16 * c + 4 * i, g.vAB + 2 * i, cs + 4 * c)
        gelu_pk(g, [acc + 16 * c + 4 * i + 2 * h for c in range(2) for h in range(2)], g.vXF)
        for c in range(2):
            for h in range(2):
                y = acc + 16 * c + 4 * i + 2 * h
                a("v_cvt_pk_bf16_f32 v%d, v%d, v%d" % (P + 4 * i + 2 * c + h, y, y + 1))
        a.vmem("buffer_store_dwordx4 %s, v%d, %s, %s offen" % (vr(P + 4 * i, 4), g.vXA + i, srd("ws"), sST[1]), "h2a")
        a.lds("ds_write_b128 v%d, %s" % (g.vCA + i, vr(P + 4 * i, 4)), "own")
        if i < 3:
            g.burst(NE if i < 2 else 10)
    g.stamp(10)

    NW = g.opt("nw", 2)
    wslots = [5, 3, 2] if NE == 1 else ([3, 2] if NE == 2 else [4, 5, 3])
    wst = list(range(4 + NE, 4 + NE + NW))
    for s, slot in zip(wst, wslots):
        q_stage(g, "w4", s, slot)
    g.burst(g.opt("s67", 5))
    a("s_lshl_b32 %s, %s, 5" % (sT2, sM))
    a("s_add_u32 %s, %s, %s" % (sT2, sT2, sK))
    a("s_lshl_b32 %s, %s, %d" % (sU0, sM, FLS))
    a("s_lshl_b32 %s, %s, 9" % (sT1, sK))
    a("s_add_u32 %s, %s, %s" % (sU0, sU0, sT1))
    a("s_add_u32 %s, %s, %d" % (sU0, sU0, FL + FL_G3))
    a("s_or_b32 %s, %s, 0x30" % (sT0, sXCC))
    a("v_mov_b32 v%d, %s" % (T[0], sT0))
    a("v_mov_b32 v%d, %s" % (T[1], sWG))
    sync(g, [("w4", 3)], "all")
    q_tr(g, "w4", 2)
    q_tr(g, "w4", 3)

    def flag3():
        a("s_mov_b64 exec, %s" % sW0M)
        a("buffer_store_byte v%d, v%d, %s, 0 offen" % (T[0], T[1], srd("dbg")))
        a("s_mov_b64 exec, -1")
        for s in range(4, 4 + NE):
            q_tr(g, "w4", s)
    g.gap, g.extra = g.opt("b0gap", 32), 0
    gemm_seq(g, acc, full(0, 4), {(g.opt("f3t", 1), g.opt("f3i", 0)): (["h2a"], None, flag3)}, False, "b0")
    g.gap, g.extra = gap, extra
    g.flush()
    if wst:
        a.wait_vm([("w4", wst[-1])])
    g.stamp(11)
    wait_local(g, 0x20, 4, sT2, sU0, sQ, sNM)
    g.stamp(12)
    for t in range(4, 18):
        if t == 4:
            g.q.append(I("s_add_u32 m0, %s, %d" % (sW10, LA + 4096 * t)))
        else:
            g.q.append(I("s_add_u32 m0, m0, 4096"))
        if t % 4 == 0 and t < 16:
            g.q.append(I("s_add_u32 %s, %s, %d" % (sM0, sQ, t >> 2)))
            g.q.append(I("s_and_b32 %s, %s, 3" % (sM0, sM0)))
            g.q.append(I("s_lshl_b32 %s, %s, 14" % (sM0, sM0)))
            g.q.append(I("s_add_u32 %s, %s, %s" % (sOFF, sM0, sH2A)))
        elif t == 16:
            g.q.append(I("s_add_u32 %s, %s, 65536" % (sOFF, sH2A)))
        else:
            g.q.append(I("s_add_u32 %s, %s, 4096" % (sOFF, sOFF)))
        g.q.append(VM("buffer_load_dwordx4 v%d, %s, %s offen sc1 lds" % (g.vXA, srd("ws"), sOFF), ("h2l", t)))
    used = [sl for sl in wslots[:NW] if sl < 4]
    g.burst(5 if 2 in used else (9 if 3 in used else g.opt("h2pre", 9)))
    for s in wst:
        q_tr(g, "w4", s)
    g.fill_lds(100)
    CA = g.vCA

    def fin_setup():
        a("v_and_b32 v%d, 7, v%d" % (T[0], L))
        a("v_lshrrev_b32 v%d, 4, v%d" % (T[1], L))
        a("v_lshl_add_u32 v%d, v%d, 3, v%d" % (T[0], T[1], T[0]))
        a("v_bfe_u32 v%d, v%d, 3, 1" % (T[1], L))
        a("v_mul_u32_u24 v%d, %d, v%d" % (T[1], 8 * PB, T[1]))
        a("v_lshl_add_u32 v%d, v%d, 4, v%d" % (T[5], T[0], T[1]))
        a("v_lshl_add_u32 v%d, v%d, 2, v%d" % (T[6], T[0], T[1]))
        a("s_lshl_b32 %s, %s, 9" % (sT0, sW))
        a("v_add_u32 v%d, %s, v%d" % (T[7], sT0, T[5]))
        a("s_lshl_b32 %s, %s, 7" % (sT1, sW))
        a("s_add_u32 %s, %s, 2048" % (sT1, sT1))
        a("v_add_u32 v%d, %s, v%d" % (T[6], sT1, T[6]))
        a("s_mul_i32 %s, %s, %d" % (sPART, sJ, 64 * PB))
        a("s_add_u32 %s, %s, %d" % (sPART, sPART, PART))
        a("s_mul_i32 %s, %s, %d" % (sINB, sK, 8 * PB))
        a("s_add_u32 %s, %s, %s" % (sINB, sINB, sPART))
        a("s_add_u32 %s, %s, %d" % (sST[4], sINB, 2 * PB))
        a("s_mul_i32 %s, %s, %d" % (sT2, sK, PB))
        a("s_add_u32 %s, %s, %s" % (sT2, sT2, sPART))
        for i in range(4):
            a("s_add_u32 %s, %s, %d" % (sST[i], sW, i))
            a("s_and_b32 %s, %s, 3" % (sST[i], sST[i]))
            a("s_mul_i32 %s, %s, %d" % (sST[i], sST[i], 16 * PB))
            a("s_add_u32 %s, %s, %s" % (sST[i], sST[i], sT2))
        a("v_lshrrev_b32 v%d, 5, v%d" % (T[4], L))
        a("v_mul_u32_u24 v%d, %d, v%d" % (T[4], 4 * PB, T[4]))
        a("v_and_b32 v%d, 31, v%d" % (T[3], L))
        a("v_lshl_add_u32 v%d, v%d, 4, v%d" % (T[10], T[3], T[4]))
        a("v_add_u32 v%d, %s, v%d" % (T[8], sT0, T[10]))
        a("v_add_u32 v%d, 2560, v%d" % (T[10], T[10]))
        a("v_lshl_add_u32 v%d, v%d, 2, v%d" % (T[9], T[3], T[4]))
        a("v_add_u32 v%d, %s, v%d" % (T[9], sT1, T[9]))
        a("s_lshl_b32 %s, %s, 3" % (sT3, sM))
        a("s_add_u32 %s, %s, %s" % (sT3, sT3, sK))
        a("s_mul_i32 %s, %s, %d" % (sT3, sT3, 8 * 1152))
    g.q3 = g.capture(fin_setup)
    g.fill_alu(g.opt("fsn", 20))
    sync(g, [("h2l", 6)], "all")
    g.stamp(13)
    g.burst(2)
    late = list(range(4 + NE + NW, 9))
    for s, slot in zip(late, [6, 7, 4, 5]):
        q_stage(g, "w4", s, slot)

    def send(i):
        b = P + 4 * i
        for c in range(2):
            for h in range(2):
                y = acc + 16 * c + 4 * i + 2 * h
                a("v_cvt_pk_bf16_f32 v%d, v%d, v%d" % (b + 2 * c + h, y, y + 1))
        a("buffer_store_dwordx4 %s, v%d, %s, %s offen sc1" % (vr(b, 4), T[7], srd("ws"), sST[i]))
        k = P + 18 if i == 0 else P + 20 + i
        a("v_bitop3_b32 v%d, v%d, v%d, v%d bitop3:0x96" % (k, b, b + 1, b + 2))
        a("v_bitop3_b32 v%d, v%d, v%d, %s bitop3:0x96" % (k, k, b + 3, sNM))
        if i == 0:
            for h in range(2):
                a("v_cvt_pk_bf16_f32 v%d, v%d, v%d" % (P + 16 + h, acc + 32 + 2 * h, acc + 33 + 2 * h))
            a("v_bitop3_b32 v%d, v%d, v%d, v%d bitop3:0x96" % (k, k, P + 16, P + 17))
            a("buffer_store_dwordx4 %s, v%d, %s, %s offen offset:2560 sc1" % (vr(P + 16, 4), T[5], srd("ws"), sST[0]))
        else:
            a("buffer_store_dword v%d, v%d, %s, %s offen sc1" % (k, T[6], srd("ws"), sST[i]))
    K0_ = g.opt("k0", 11)
    frags = full(4, K0_) + [(t, i) for i in range(4) for t in range(K0_, 18)]
    gates = {(5, 0): ([("h2l", 8)], None, None), (7, 0): ([("h2l", 11)], None, None),
             (K0_ - 2, 0): ([("h2l", 17)], None, None),
             }
    for n, s_ in enumerate(reversed(late)):
        key = (min(K0_ + 1 - 2 * n, 2 * s_ - 1), 0) if n == 0 or K0_ + 1 - 2 * n >= K0_ else (min(K0_ + 1 - 2 * n, 2 * s_ - 2), 2)
        assert key not in gates
        gates[key] = ([("w4", s_)], None, lambda s_=s_: q_tr(g, "w4", s_))
    for i in range(3):
        gates[(K0_ + 2, i + 1)] = (None, None, (lambda i=i: g.q3.extend(g.capture(lambda: send(i)))))
    gemm_seq(g, acc, frags, gates, True, "b")
    g.flush()
    g.stamp(14)
    send(3)
    g.stamp(15)

    X = g.vXF
    C = X + 16

    def poll_inbox(ninth):
        Lq, Lqd = a.label("inb"), a.label("inbdone")
        a("s_mov_b32 %s, 0" % sCNT)
        if "findrain" in opts and not ninth:
            a("s_waitcnt vmcnt(0)")
        a(Lq + ":")
        for s in range(4):
            so, off = (sINB if s < 2 else sST[4]), PB * (s & 1)
            a("buffer_load_dwordx4 %s, v%d, %s, %s offen offset:%d sc1" % (vr(X + 4 * s, 4), T[8], srd("ws"), so, off))
            if ninth:
                a("buffer_load_dwordx3 %s, v%d, %s, %s offen offset:%d sc1" % (vr(C + 4 * s, 3), T[10], srd("ws"), so, off))
            else:
                a("buffer_load_dword v%d, v%d, %s, %s offen offset:%d sc1" % (C + 4 * s + 2, T[9], srd("ws"), so, off))
        a("s_add_u32 %s, %s, 1" % (sCNT, sCNT))
        a("v_mov_b32 v%d, 0" % T[0])
        a("s_waitcnt vmcnt(0)")
        for s in range(4):
            x, k = X + 4 * s, C + 4 * s + 2
            a("v_bitop3_b32 v%d, v%d, v%d, v%d bitop3:0x96" % (k, k, x, x + 1))
            a("v_bitop3_b32 v%d, v%d, v%d, v%d bitop3:0x96" % (k, k, x + 2, x + 3))
            if ninth:
                a("v_bitop3_b32 v%d, v%d, v%d, v%d bitop3:0x96" % (k, k, k - 2, k - 1))
            a("v_bitop3_b32 v%d, v%d, %s, v%d bitop3:0xbe" % (T[0], k, sNM, T[0]))
        a("v_cmp_ne_u32 vcc, 0, v%d" % T[0])
        a("s_cbranch_vccz %s" % Lqd)
        if g.opt("fsleep", 0):
            a("s_sleep %d" % g.opt("fsleep", 0))
        a("s_cmp_lt_u32 %s, 0x20000" % sCNT)
        a("s_cbranch_scc1 %s" % Lq)
        a(Lqd + ":")

    def finish(src, nw, F, res, dst):
        for s in range(4):
            for i in range(nw):
                lo = F + 2 * i + (2 * nw if s else 0)
                a("v_lshlrev_b32 v%d, 16, v%d" % (lo, src + 4 * s + i))
                a("v_and_b32 v%d, 0xffff0000, v%d" % (lo + 1, src + 4 * s + i))
            if s:
                for i in range(nw):
                    a("v_pk_add_f32 %s, %s, %s" % (vr(F + 2 * i, 2), vr(F + 2 * i, 2), vr(F + 2 * nw + 2 * i, 2)))
        for i in range(nw):
            a("v_permlane32_swap_b32 v%d, v%d" % (F + i, F + nw + i))
        for i in range(nw // 2):
            a("v_lshlrev_b32 v%d, 16, v%d" % (F + 2 * nw + 2 * i, res + i))
            a("v_and_b32 v%d, 0xffff0000, v%d" % (F + 2 * nw + 2 * i + 1, res + i))
        for i in range(nw // 2):
            a("v_pk_add_f32 %s, %s, %s" % (vr(F + 2 * i, 2), vr(F + 2 * i, 2), vr(F + nw + 2 * i, 2)))
        for i in range(nw // 2):
            a("v_cvt_pk_bf16_f32 v%d, v%d, v%d" % (dst + i, F + 2 * i, F + 2 * i + 1))
        for i in range(nw // 2):
            a("v_lshlrev_b32 v%d, 16, v%d" % (F + 2 * i, dst + i))
            a("v_and_b32 v%d, 0xffff0000, v%d" % (F + 2 * i + 1, dst + i))
        for i in range(nw // 2):
            a("v_pk_add_f32 %s, %s, %s" % (vr(F + 2 * i, 2), vr(F + 2 * i, 2), vr(F + 2 * nw + 2 * i, 2)))
        for i in range(nw // 2):
            a("v_cvt_pk_bf16_f32 v%d, v%d, v%d" % (dst + i, F + 2 * i, F + 2 * i + 1))

    Lx, Ly = a.label("fin"), a.label("fin")
    a("s_lshr_b32 %s, %s, 1" % (sT0, sK))
    a("s_cmp_lg_u32 %s, %s" % (sW, sT0))
    a("s_cbranch_scc1 %s" % Lx)
    poll_inbox(True)
    finish(C, 2, acc, RES + 2, g.vAB + 2)
    a("buffer_store_dword v%d, v%d, %s, %s offen" % (g.vAB + 2, g.vOA + 1, srd("out"), sT3))
    a("s_branch %s" % Ly)
    a(Lx + ":")
    poll_inbox(False)
    a(Ly + ":")
    g.stamp(16)
    finish(X, 4, acc, RES, g.vAB)
    a("buffer_store_dwordx2 %s, v%d, %s, %s offen" % (vr(g.vAB, 2), g.vOA, srd("out"), sT3))
    Lz = a.label("fin")
    a("s_or_b32 %s, %s, %s" % (sT0, sK, sQ))
    a("s_or_b32 %s, %s, %s" % (sT0, sT0, sW))
    a("s_cmp_lg_u32 %s, 0" % sT0)
    a("s_cbranch_scc1 %s" % Lz)
    a("s_lshl_b32 %s, %s, %d" % (sT0, sM, FLS))
    a("v_mov_b32 v%d, %s" % (T[0], sT0))
    a("v_mov_b32 v%d, %s" % (T[1], sNM))
    a("s_mov_b64 exec, 1")
    a("buffer_store_dword v%d, v%d, %s, 0 offen sc1" % (T[1], T[0], srd("ws")))
    a(Lz + ":")
    if g.stamps:
        a("s_mov_b64 exec, -1")
        g.stamp(17)
        a("s_waitcnt vmcnt(0)")
        g.stamp(18)
        for i in range(len(g.fines)):
            a("v_writelane_b32 v%d, s%d, %d" % (g.vSTAMP, 90 + 2 * i, 32 + i))
        a("v_writelane_b32 v%d, s64, 63" % g.vSTAMP)
        a("s_cmp_lg_u32 %s, 0" % sW)
        a("s_cbranch_scc1 %s" % Lend)
        a("s_lshl_b32 %s, s2, 8" % sT0)
        a("s_add_u32 %s, %s, %d" % (sT0, sT0, STAMP))
        a("v_lshlrev_b32 v%d, 2, v%d" % (T[0], L))
        a("buffer_store_dword v%d, v%d, %s, %s offen" % (g.vSTAMP, T[0], srd("ws"), sT0))
        if probe:
            a("s_cmp_lg_u32 s2, %d" % probe[0])
            a("s_cbranch_scc1 %s" % Lend)
            a("v_readlane_b32 %s, v%d, %d" % (sT1, g.vSTAMP, probe[1]))
            a("s_sub_u32 %s, %s, s64" % (sT1, sT1))
            a("s_mul_i32 %s, %s, %d" % (sT1, sT1, probe[2]))
            a("s_add_u32 %s, %s, 10000" % (sT1, sT1))
            a("s_min_u32 %s, %s, 200000" % (sT1, sT1))
            a("L_probe:")
            a("s_memrealtime s[60:61]")
            a("s_waitcnt lgkmcnt(0)")
            a("s_sub_u32 %s, s60, s64" % sT2)
            a("s_cmp_lt_u32 %s, %s" % (sT2, sT1))
            a("s_cbranch_scc1 L_probe")
    a(Lend + ":")
    a("s_endpgm")
    for f in g.slow:
        a("s_nop 7")
        a("s_nop 7")
        f()

    body = a.text()
    src = HEADER + "; @launch grid=(256,1,1) block=(256,1,1) lds=%d\n" % LDS_BYTES
    src += '.amdgcn_target "amdgcn-amd-amdhsa--gfx950"\n.text\n.globl %s_kernel\n.p2align 8\n.type %s_kernel,@function\n%s_kernel:\n' % (NAME, NAME, NAME)
    src += body
    src += '''.section .rodata,"a"
.p2align 6
.amdhsa_kernel %s_kernel
  .amdhsa_next_free_vgpr 512
  .amdhsa_next_free_sgpr 102
  .amdhsa_accum_offset 256
  .amdhsa_group_segment_fixed_size 0
  .amdhsa_kernarg_size 64
  .amdhsa_user_sgpr_count 2
  .amdhsa_user_sgpr_kernarg_segment_ptr 1
  .amdhsa_system_sgpr_workgroup_id_x 1
.end_amdhsa_kernel
''' % NAME
    return src


if __name__ == "__main__":
    out = sys.argv[1]
    probe = None
    for o in sys.argv[2:]:
        if o.startswith("probe="):
            probe = tuple(int(x) for x in o[6:].split(","))
    open(out, "w").write(build(set(sys.argv[2:]), probe))
```

```python
import re

TRANS = ("v_exp_f32", "v_log_f32", "v_rcp_f32", "v_rsq_f32", "v_sqrt_f32", "v_sin_f32", "v_cos_f32")
REG_RE = re.compile(r"^-?\|?(?:abs\()?([vas])(?:(\d+)|\[(\d+):(\d+)\])\)?\|?$")


def regs_of(tok):
    tok = tok.strip()
    if tok in ("vcc", "exec"):
        return [(tok, 0), (tok, 1)]
    if tok in ("vcc_lo", "exec_lo"):
        return [(tok[:-3], 0)]
    if tok in ("vcc_hi", "exec_hi"):
        return [(tok[:-3], 1)]
    if tok == "m0":
        return [("m0", 0)]
    m = REG_RE.match(tok)
    if not m:
        return []
    c = m.group(1)
    if m.group(2) is not None:
        return [(c, int(m.group(2)))]
    return [(c, i) for i in range(int(m.group(3)), int(m.group(4)) + 1)]


class Ins:
    def __init__(self, text):
        self.text = text
        t = text.split(";")[0].strip()
        self.is_label = t.endswith(":")
        self.is_dir = t.startswith(".")
        self.op = ""
        self.w = []
        self.r = []
        self.srcc = []
        self.sdata = []
        if not t or self.is_label or self.is_dir:
            return
        parts = t.split(None, 1)
        self.op = parts[0]
        ops = []
        if len(parts) > 1:
            depth = 0
            cur = ""
            for ch in parts[1]:
                if ch in "[(":
                    depth += 1
                if ch in "])":
                    depth -= 1
                if ch == "," and depth == 0:
                    ops.append(cur.strip())
                    cur = ""
                else:
                    cur += ch
            ops.append(cur.strip())
        if ops:
            last = ops[-1].split()
            self.mods = last[1:]
            ops[-1] = last[0] if last else ""
        else:
            self.mods = []
        self.ops = ops
        op = self.op
        R = [regs_of(o) for o in ops]
        flat = lambda xs: [x for l in xs for x in l]
        if op.startswith("v_mfma"):
            self.w = R[0]
            self.r = flat(R[1:])
            self.srcc = R[3]
            self.ab = R[1] + R[2]
        elif op.startswith("v_cmp"):
            self.w = R[0]
            self.r = flat(R[1:])
        elif op.startswith("v_permlane") and "swap" in op:
            self.w = R[0] + R[1]
            self.r = R[0] + R[1]
        elif op.startswith(("v_add_co", "v_sub_co", "v_addc_co")):
            self.w = R[0] + R[1]
            self.r = flat(R[2:])
        elif op.startswith("v_"):
            self.w = R[0]
            self.r = flat(R[1:])
            if op.startswith(("v_fmac", "v_dot2c", "v_pk_fmac")) or "dpp" in op:
                self.r += R[0]
            if op.startswith("v_cndmask") and len(ops) == 3:
                self.r += [("vcc", 0), ("vcc", 1)]
        elif op.startswith("buffer_store") or op.startswith("buffer_atomic"):
            self.r = flat(R)
            self.sdata = R[0] if ("x3" in op or "x4" in op) else []
        elif op.startswith("global_store"):
            self.r = flat(R)
            self.sdata = R[1] if ("x3" in op or "x4" in op) else []
        elif op.startswith("buffer_load"):
            if "lds" in self.mods:
                self.r = flat(R) + [("m0", 0)]
            else:
                self.w = R[0]
                self.r = flat(R[1:])
        elif op.startswith("global_load_lds"):
            self.r = flat(R) + [("m0", 0)]
        elif op.startswith("global_load"):
            self.w = R[0]
            self.r = flat(R[1:])
        elif op.startswith(("ds_write", "ds_add")):
            self.r = flat(R)
        elif op.startswith("ds_"):
            self.w = R[0]
            self.r = flat(R[1:])
        elif op.startswith(("s_cmp", "s_cbranch", "s_branch", "s_waitcnt", "s_nop", "s_barrier", "s_endpgm",
                            "s_sleep", "s_setprio", "s_bitcmp")):
            self.r = flat(R)
        elif op.startswith("s_"):
            self.w = R[0] if R else []
            self.r = flat(R[1:])
            if "saveexec" in op:
                self.w = self.w + [("exec", 0), ("exec", 1)]

    @property
    def valu(self):
        return self.op.startswith("v_") and not self.op.startswith("v_mfma")

    @property
    def mfma(self):
        return self.op.startswith("v_mfma")

    @property
    def vmem(self):
        return self.op.startswith(("buffer_", "global_"))

    @property
    def ds(self):
        return self.op.startswith("ds_")

    @property
    def states(self):
        if self.op == "s_nop":
            return int(self.ops[0], 0) + 1
        return 1 if self.op else 0


def need(p, c):
    n = 0
    pw, cr, cw = set(p.w), set(c.r), set(c.w)
    if p.mfma:
        passes = 8 if "32x32x16" in p.op else 4
        big = {4: 8, 8: 12}[passes]
        if c.mfma:
            if pw & set(c.ab):
                n = max(n, big)
            ov = pw & set(c.srcc)
            if ov and (p.w != c.srcc or p.op != c.op):
                n = max(n, {4: 6, 8: 10}[passes])
            elif pw & cw and p.w != c.srcc:
                n = max(n, big)
        elif (c.valu or c.vmem or c.ds) and pw & (cr | cw):
            n = max(n, big)
        if c.valu and set(p.srcc) & cw:
            n = max(n, {4: 3, 8: 7}[passes])
    if p.valu:
        vw = {x for x in pw if x[0] in "va" and len(x[0]) == 1}
        sw = pw - vw
        if c.mfma and vw & cr:
            n = max(n, 2)
        if c.valu and "dpp" in c.op and vw & cr:
            n = max(n, 2)
        if c.op.startswith("v_permlane") and vw & cr:
            n = max(n, 2)
        if c.op.startswith(("v_readlane", "v_readfirstlane")) and vw & cr:
            n = max(n, 1)
        if p.op.startswith(TRANS) and c.valu and not c.op.startswith(TRANS) and vw & cr:
            n = max(n, 1)
        if p.op.startswith(TRANS) and (c.vmem or c.ds) and vw & cr:
            n = max(n, 1)
        if "sdwa" in p.op and c.valu and vw & (cr | cw):
            n = max(n, 1)
        if p.op.startswith("v_dot"):
            if vw & (cr | cw) and (c.op != p.op):
                n = max(n, 3)
        if sw & cr:
            if c.vmem:
                n = max(n, 5)
            elif c.op.startswith(("v_readlane", "v_writelane")):
                n = max(n, 4)
            elif c.valu:
                n = max(n, 2)
            elif c.op.startswith("s_"):
                n = max(n, 2)
        if sw and c.op.startswith(("s_cbranch_vcc", "s_cbranch_exec")) and any(x[0] in ("vcc", "exec") for x in sw):
            n = max(n, 5)
    if p.op.startswith("s_") and ("m0", 0) in pw and ("m0", 0) in cr and c.vmem:
        n = max(n, 1)
    if p.sdata and set(p.sdata) & cw:
        n = max(n, 2)
    return n


def fix_hazards(lines):
    out = []
    hist = []
    for text in lines:
        c = Ins(text)
        if c.op:
            dist = 0
            pad = 0
            for p in reversed(hist):
                k = need(p, c)
                if k > dist:
                    pad = max(pad, k - dist)
                dist += p.states
                if dist >= 20:
                    break
            while pad > 0:
                k = min(pad, 16)
                nop = Ins("s_nop %d" % (k - 1))
                pos = len(out)
                while pos > 0 and out[pos - 1].strip().startswith(".p2align"):
                    pos -= 1
                out.insert(pos, "    s_nop %d" % (k - 1))
                hist.append(nop)
                pad -= k
            hist.append(c)
            if len(hist) > 40:
                hist = hist[-24:]
        out.append(text)
    return out


class Asm:
    def __init__(self):
        self.lines = []
        self.vm = []
        self.lg = []
        self.nlab = 0

    def __call__(self, s):
        for l in s.split("\n"):
            l = l.strip()
            if l:
                self.lines.append(("" if l.endswith(":") else "    ") + l)

    def label(self, p="L"):
        self.nlab += 1
        return "%s_%d" % (p, self.nlab)

    def vmem(self, s, tag):
        self(s)
        self.vm.append(tag)

    def lds(self, s, tag):
        self(s)
        self.lg.append(tag)

    def _n(self, lst, tags):
        if isinstance(tags, (str, tuple)):
            tags = [tags]
        idx = -1
        for i, t in enumerate(lst):
            if t in tags:
                idx = i
        return idx

    def wait_vm(self, tags=None):
        if tags is None:
            self("s_waitcnt vmcnt(0)")
            self.vm = []
            return
        i = self._n(self.vm, tags)
        if i < 0:
            return
        n = len(self.vm) - 1 - i
        if n > 63:
            n = 63
            i = len(self.vm) - 1 - n
        self("s_waitcnt vmcnt(%d)" % n)
        self.vm = self.vm[i + 1:]

    def wait_lg(self, tags=None):
        if tags is None:
            self("s_waitcnt lgkmcnt(0)")
            self.lg = []
            return
        i = self._n(self.lg, tags)
        if i < 0:
            return
        n = len(self.lg) - 1 - i
        if n > 15:
            n = 15
            i = len(self.lg) - 1 - n
        self("s_waitcnt lgkmcnt(%d)" % n)
        self.lg = self.lg[i + 1:]

    def text(self):
        return "\n".join(fix_hazards(self.lines)) + "\n"
```

```python
import sys, struct
from asmlib import Asm

NAME = "standalone__mixer_s_mlp__sampling"
HEADER = open("cdna_kernels/%s.s.ref" % NAME).read().split("; Override")[0]

FL = 0
FL_F0, FL_G1, FL_G3, FL_F2 = 128, 128 * 33, 128 * 51, 16384
FLS = 15
HS = 0x40000
X1 = 0x100000
H2A = 0x200000
PART = 0x800000
PB = 2432
STAMP = 0x2000000
LA, LB, LST = 0, 73728, 147456
LA2 = LA + 36864
LBAD = LST + 1024
LPS = LST + 1280
LDS_BYTES = 163840
SLOT = 18432

SRD = dict(x=8, w1=12, w2=16, w3=20, w4=24, out=28, dbg=32, ws=36)
SIZES = dict(x=589824, w1=663552, w2=663552, w3=5308416, w4=5308416, out=589824, dbg=256, ws=268435456)
srd = lambda n: "s[%d:%d]" % (SRD[n], SRD[n] + 3)
sK, sJ, sM, sQ, sW, sBL, sCB, sXCC, sNM, sNK = ["s%d" % i for i in range(40, 50)]
sT0, sT1, sT2, sT3, sOFF, sCNT, sM0, sWG, sU0, sU1 = ["s%d" % i for i in range(50, 60)]
sSTAMP = "s[60:61]"
sW10, sWB, sH2A, sBAT, sW3B, sW4B = ["s%d" % i for i in range(66, 72)]
sC1 = "s[72:73]"
sW0M, sW1M = "s[74:75]", "s[88:89]"
sW0F = "s[6:7]"
sSHM = "s[76:77]"
sHSO, sX1O = "s78", "s79"
sST = ["s80", "s81", "s82", "s83", "s84"]
sPART, sINB, sW49 = "s85", "s86", "s87"
sW4C = ["s71", "s88", "s89", "s3"]
K0 = 2.0 * 0.7978845608028654 * 1.4426950408889634
K1 = K0 * 0.044715
MFMA = "v_mfma_f32_16x16x32_bf16"


def f2h(x):
    return "0x%08x" % struct.unpack("<I", struct.pack("<f", x))[0]


def vr(b, n):
    return "v[%d:%d]" % (b, b + n - 1) if n > 1 else "v%d" % b


def ar(b, n):
    return "a[%d:%d]" % (b, b + n - 1) if n > 1 else "a%d" % b


I = lambda text: [("i", text, None)]
VM = lambda text, tag: [("vm", text, tag)]
LD = lambda text, tag: [("lds", text, tag)]


class G:
    def __init__(self, opts):
        self.a = Asm()
        self.o = opts
        self.stamps = "stamps" in opts
        self.nv = 1
        self.q = []
        self.q2 = []
        self.q3 = []
        self.clk = 0
        self.gap = self.opt("gap", 64)
        self.slot_of = {}
        self.maxlds = 1
        self.any3 = False
        self.extra = self.opt('extra', 0)
        self.fines = []
        self.only = []
        for o in opts:
            if o.startswith('fine='):
                self.fines = o[5:].split(',')
            if o.startswith('only='):
                self.only = [int(x) for x in o[5:].split(',')]

    def v(self, n=1, align=1):
        self.nv = (self.nv + align - 1) // align * align
        r = self.nv
        self.nv += n
        assert self.nv <= 256, self.nv
        return r

    def stamp(self, i):
        self.fine("s%d" % i)
        if not self.stamps or (self.only and i not in self.only):
            return
        a = self.a
        a("s_memrealtime %s" % sSTAMP)
        a("s_waitcnt lgkmcnt(0)")
        a.lg = []
        a("v_writelane_b32 v%d, s60, %d" % (self.vSTAMP, i))

    def fine(self, key):
        if key in self.fines:
            i = self.fines.index(key)
            self.a("%s s[%d:%d]" % ("s_memtime" if "finecyc" in self.o else "s_memrealtime", 90 + 2 * i, 91 + 2 * i))

    def opt(self, name, default):
        for o in self.o:
            if o.startswith(name + "="):
                return int(o[len(name) + 1:])
        return default

    def emit(self, f):
        for kind, text, tag in f:
            if kind == "vm":
                self.a.vmem(text, tag)
                self.clk = -self.extra if isinstance(tag, tuple) and tag[0] in ("w3", "w4") and len(f) == 1 else 0
            elif kind == "lds":
                self.a.lds(text, tag)
            else:
                self.a(text)
        return len(f)

    def fill_vm(self, n, cyc):
        self.clk += cyc
        k = 0
        while k < n and self.q and (self.clk >= self.gap or not any(x[0] == "vm" for x in self.q[0])):
            k += self.emit(self.q.pop(0))
        return k

    def fill_lds(self, n):
        k = 0
        while k < n and self.q2:
            k += self.emit(self.q2.pop(0))
        return k

    def fill_alu(self, n):
        k = 0
        while k < n and self.q3:
            self.a(self.q3.pop(0))
            k += 1
        return k

    def mgap(self, ds=(), n=2, cyc=16):
        self.clk += cyc
        is_s = lambda f: len(f) == 1 and f[0][0] == "i"
        is_vm3 = lambda l: l.startswith("buffer_")
        if self.q and not is_s(self.q[0]) and self.clk >= self.gap and ((not ds and n == 2) or self.any3):
            self.emit(self.q.pop(0))
            for f in ds:
                f()
            return
        if self.q3 and is_vm3(self.q3[0]) and not ds:
            self.fill_alu(1)
            return
        if self.q and is_s(self.q[0]):
            self.emit(self.q.pop(0))
        elif self.q3 and self.q3[0].startswith("s_"):
            self.fill_alu(1)
        for f in ds:
            f()
            n -= 1
        lds_used = len(ds)
        while n > 0:
            if self.q and is_s(self.q[0]):
                self.emit(self.q.pop(0))
            elif self.q2 and lds_used < self.maxlds:
                self.fill_lds(1)
                lds_used += 1
            elif self.q3 and not is_vm3(self.q3[0]):
                self.fill_alu(1)
                lds_used = 9
            else:
                break
            n -= 1

    def burst(self, nvm=10 ** 6):
        while nvm > 0 and self.q:
            f = self.q.pop(0)
            nvm -= sum(x[0] == "vm" for x in f)
            self.emit(f)

    def flush(self):
        self.burst()
        self.fill_lds(10 ** 6)
        self.fill_alu(10 ** 6)

    def capture(self, fn):
        keep, self.a.lines = self.a.lines, []
        fn()
        got, self.a.lines = [l.strip() for l in self.a.lines], keep
        return got

    def weave(self, lines):
        for l in lines:
            self.a(l)
            if not l.startswith("s_cmp"):
                self.fill_vm(3, 4)


def ln_gelu(g, items, t, pace=False):
    a = g.a
    n = 2 * len(items)
    it = [(y, c, k, t + 2 * i) for i, (y, c, k) in enumerate(items)]
    a(".p2align 3")
    for y, c, k, u in it:
        a("v_pk_fma_f32 %s, %s, %s, %s op_sel_hi:[1,0,1]" % (vr(y, 2), vr(c, 2), vr(k, 2), vr(y, 2)))
    for y, c, k, u in it:
        a("v_pk_mul_f32 %s, %s, %s" % (vr(u, 2), vr(y, 2), vr(y, 2)))
    for y, c, k, u in it:
        a("v_pk_fma_f32 %s, %s, %s, %s op_sel:[0,0,1] op_sel_hi:[1,0,1]" % (vr(u, 2), vr(u, 2), vr(k + 2, 2), vr(k + 2, 2)))
    for y, c, k, u in it:
        a("v_pk_mul_f32 %s, %s, %s" % (vr(u, 2), vr(u, 2), vr(y, 2)))
    if pace:
        g.burst(1)
    for i in range(n):
        a("v_exp_f32 v%d, v%d" % (t + i, t + i))
    if pace:
        g.burst(1)
    for y, c, k, u in it:
        a("v_pk_fma_f32 %s, %s, %s, %s op_sel:[0,1,1]" % (vr(u, 2), vr(u, 2), vr(k, 2), vr(k, 2)))
    for i in range(n):
        a("v_rcp_f32 v%d, v%d" % (t + i, t + i))
    if pace:
        g.burst(1)
    for y, c, k, u in it:
        a("v_pk_mul_f32 %s, %s, %s" % (vr(y, 2), vr(y, 2), vr(u, 2)))


def ln_scalars(g, k):
    a = g.a
    s, q, t, r = k, k + 1, k + 2, k + 3
    a("v_mul_f32 v%d, %s, v%d" % (s, f2h(-1.0 / 576), s))
    a("v_mul_f32 v%d, %s, v%d" % (q, f2h(1.0 / 576), q))
    a("v_fma_f32 v%d, -v%d, v%d, v%d" % (q, s, s, q))
    a("v_max_f32 v%d, 0, v%d" % (q, q))
    a("v_cvt_pk_bf16_f32 v%d, v%d, v%d" % (t, s, q))
    a("v_lshlrev_b32 v%d, 16, v%d" % (s, t))
    a("v_and_b32 v%d, 0xffff0000, v%d" % (q, t))
    a("v_add_f32 v%d, %s, v%d" % (q, f2h(1e-5), q))
    a("v_cvt_pk_bf16_f32 v%d, v%d, v%d" % (t, q, q))
    a("v_lshlrev_b32 v%d, 16, v%d" % (q, t))
    a("v_sqrt_f32 v%d, v%d" % (q, q))
    a("v_cvt_pk_bf16_f32 v%d, v%d, v%d" % (t, q, q))
    a("v_lshlrev_b32 v%d, 16, v%d" % (q, t))
    a("v_rcp_f32 v%d, v%d" % (r, q))
    a("v_mul_f32 v%d, v%d, v%d" % (t, r, r))
    a("v_mul_f32 v%d, %s, v%d" % (r, f2h(-K0), r))
    a("v_mul_f32 v%d, v%d, v%d" % (t, t, r))
    a("v_mul_f32 v%d, %s, v%d" % (t, f2h(K1 / K0), t))


def signal_local(g, val, tag):
    a = g.a
    a("s_or_b32 %s, %s, %d" % (sT0, sXCC, val))
    a("v_mov_b32 v%d, %s" % (g.vT[0], sT0))
    a("v_mov_b32 v%d, %s" % (g.vT[1], sWG))
    a.wait_vm(tag)
    a("s_barrier")
    a("s_mov_b64 exec, %s" % sW0M)
    a("buffer_store_byte v%d, v%d, %s, 0 offen" % (g.vT[0], g.vT[1], srd("dbg")))
    a("s_mov_b64 exec, -1")


def poll_setup(g, n, first_s):
    g.a("v_min_u32 v%d, %d, v%d" % (g.vPL + 1, n - 1, g.vLANE))
    g.a("v_lshl_add_u32 v%d, v%d, 3, %s" % (g.vPL, g.vPL + 1, first_s))


def poll_early(g):
    g.a("s_mov_b64 exec, %s" % sW0F)
    g.a("buffer_load_ubyte v%d, v%d, %s, 0 offen sc1" % (g.vT[2], g.vPL, srd("dbg")))
    g.a("s_mov_b64 exec, -1")


def wait_local(g, val, goff_s, me_s, nonce, early=False):
    a = g.a
    Ld, L1, L1b, Ls = a.label("wl_done"), a.label("wl_fast"), a.label("wl_chk"), a.label("wl_slow")
    t0, t1, t2, t3 = g.vPL, g.vPL + 1, g.vT[2], g.vT[3]
    a("s_cmp_lg_u32 %s, 0" % sW)
    a("s_cbranch_scc1 %s" % Ld)
    a("s_or_b32 %s, %s, %d" % (sT0, sXCC, val))
    a("s_mov_b32 %s, 0" % sCNT)
    if early:
        a("s_branch %s" % L1b)
    a(L1 + ":")
    a("s_cmp_ge_u32 %s, 64" % sCNT)
    a("s_cbranch_scc1 %s" % Ls)
    a("buffer_load_ubyte v%d, v%d, %s, 0 offen sc1" % (t2, t0, srd("dbg")))
    a("s_add_u32 %s, %s, 1" % (sCNT, sCNT))
    a(L1b + ":")
    a("s_waitcnt vmcnt(0)")
    a("v_and_b32 v%d, %d, v%d" % (t3, val | 7, t2))
    a("v_cmp_ne_u32 vcc, %s, v%d" % (sT0, t3))
    a("s_cbranch_vccnz %s" % L1)
    a(Ld + ":")
    a("s_barrier")

    def slow():
        L2, L3 = a.label("wl_poll"), a.label("wl_pub")
        a(Ls + ":")
        a("buffer_wbl2 sc1")
        a("v_lshl_add_u32 v%d, v%d, 7, %s" % (t1, t1, goff_s))
        a("s_waitcnt vmcnt(0)")
        a("s_lshl_b32 %s, %s, 7" % (sT1, me_s))
        a("s_add_u32 %s, %s, %s" % (sT1, sT1, goff_s))
        a("v_mov_b32 v%d, %s" % (t2, sT1))
        a("v_mov_b32 v%d, %s" % (t3, nonce))
        a("s_mov_b64 exec, 1")
        a("buffer_store_dword v%d, v%d, %s, 0 offen sc1" % (t3, t2, srd("ws")))
        a("s_mov_b64 exec, -1")
        a(L2 + ":")
        a("buffer_load_ubyte v%d, v%d, %s, 0 offen sc1" % (t2, t0, srd("dbg")))
        a("buffer_load_dword v%d, v%d, %s, 0 offen sc1" % (t3, t1, srd("ws")))
        a("s_waitcnt vmcnt(0)")
        a("v_and_b32 v%d, %d, v%d" % (t2, val | 7, t2))
        a("v_cmp_ne_u32 vcc, %s, v%d" % (sT0, t2))
        a("v_cmp_ne_u32 s[62:63], %s, v%d" % (nonce, t3))
        a("s_and_b64 vcc, vcc, s[62:63]")
        a("s_cbranch_vccz %s" % L3)
        a("s_add_u32 %s, %s, 1" % (sCNT, sCNT))
        a("s_cmp_lt_u32 %s, 0x20000" % sCNT)
        a("s_cbranch_scc1 %s" % L2)
        a(L3 + ":")
        a("buffer_inv sc1")
        a("s_waitcnt vmcnt(0)")
        a("s_branch %s" % Ld)
    g.slow.append(slow)


def q_linear(g, lds_base, glob_s, per_wave, tag):
    g.q.append(I("s_add_u32 m0, %s, %d" % (sW10, lds_base)))
    g.q.append(I("s_add_u32 %s, %s, %s" % (sOFF, sW10, glob_s)))
    for i in range(per_wave):
        g.q.append(VM("buffer_load_dwordx4 v%d, %s, %s offen sc1 lds" % (g.vL16, srd("ws"), sOFF), (tag, i)))
        if i + 1 < per_wave:
            g.q.append(I("s_add_u32 m0, m0, 4096"))
            g.q.append(I("s_add_u32 %s, %s, 4096" % (sOFF, sOFF)))


def q_w12(g, name, t0_s, n, lds0, tag, fixed=False):
    if isinstance(t0_s, int):
        g.q.append(I("s_add_u32 m0, %s, %d" % (sW10, lds0 + 4096 * t0_s)))
        g.q.append(I("s_mov_b32 %s, %d" % (sOFF, 36864 * t0_s)))
    elif fixed:
        g.q.append(I("s_add_u32 m0, %s, %d" % (sW10, lds0)))
        g.q.append(I("s_mul_i32 %s, %s, 36864" % (sOFF, t0_s)))
    else:
        g.q.append(I("s_lshl_b32 %s, %s, 12" % (sM0, t0_s)))
        g.q.append(I("s_add_u32 %s, %s, %s" % (sM0, sM0, sW10)))
        g.q.append(I("s_add_u32 m0, %s, %d" % (sM0, lds0)))
        g.q.append(I("s_mul_i32 %s, %s, 36864" % (sOFF, t0_s)))
    for t in range(n):
        g.q.append(VM("buffer_load_dwordx4 v%d, %s, %s offen lds" % (g.vW12, srd(name), sOFF), tag))
        if t < n - 1:
            g.q.append(I("s_add_u32 m0, m0, 4096"))
            g.q.append(I("s_add_u32 %s, %s, 36864" % (sOFF, sOFF)))


def tr12(g, t, addr):
    bases = [(LA2, g.vTR12), (LB, g.vTR12 + 1), (LB + 36864, g.vTR12 + 2)]
    b, v = [x for x in bases if x[0] <= addr][-1]
    return [LD("ds_read_b64_tr_b16 %s, v%d offset:%d" % (vr(g.vWF + 4 * t, 2), v, addr - b), ("tr12", t)),
            LD("ds_read_b64_tr_b16 %s, v%d offset:%d" % (vr(g.vWF + 4 * t + 2, 2), v, addr - b + 512), ("tr12", t))]


def q_stage(g, name, s, slot):
    vb = g.vWB if name == "w3" else g.vWB + 5
    g.slot_of[(name, s)] = slot
    g.q.append(I("s_add_u32 m0, %s, %d" % (sWB, slot * SLOT)))
    if name == "w3":
        g.q.append(I("s_add_u32 %s, %s, %d" % (sOFF, sW3B, s * 64 * 9216)))
    elif s < 8:
        g.q.append(I("s_add_u32 %s, %s, %d" % (sOFF, sW4C[s >> 1], (s & 1) * 64 * 1152)))
    else:
        g.q.append(I("s_mov_b32 %s, %s" % (sOFF, sW49)))
    g.q.append(I("s_mov_b32 exec_hi, 0")
               + VM("buffer_load_dwordx4 v%d, %s, %s offen lds" % (vb, srd(name), sOFF), (name, s))
               + I("s_mov_b32 exec_hi, -1"))
    for i in range(1, 5):
        g.q.append(VM("buffer_load_dwordx4 v%d, %s, %s offen offset:%d lds"
                      % (vb + i, srd(name), sOFF, 512 + 1024 * (i - 1)), (name, s)))


def wreg(g, name, t, c, n=4, o=0):
    if name == "w4" and t < 3:
        return ar(216 + 12 * t + 4 * c + o, n)
    if name == "w4" and t == 3:
        return vr(g.vWF + 40 + 4 * c + o, n)
    return ar(12 * t + 4 * c + o, n)


def q_tr(g, name, s):
    slot = g.slot_of[(name, s)]
    hi = slot // 3
    for kk in range(2):
        t = 2 * s + kk
        off = (slot % 3) * SLOT + kk * 9216
        for c in range(3):
            base = g.vTRB + hi if c < 2 else g.vTRB + 3 + hi
            o = off + (32 if c == 1 else 0)
            g.q2.append(LD("ds_read_b64_tr_b16 %s, v%d offset:%d" % (wreg(g, name, t, c, 2), base, o), ("trb", t)))
            g.q2.append(LD("ds_read_b64_tr_b16 %s, v%d offset:%d" % (wreg(g, name, t, c, 2, 2), base, o + 4608), ("trb", t)))


def colsum(g, stages):
    a = g.a
    for s in stages:
        for t in (2 * s, 2 * s + 1):
            a.wait_lg(("trb", t))
            for c in range(3):
                d = vr(g.vCS + 4 * c, 4)
                a("%s %s, %s, %s, %s" % (MFMA, d, ar(12 * t + 4 * c, 4), vr(g.vONES, 4), d if t else "0"))
                k = g.fill_lds(2)
                if k < 2:
                    g.mgap(n=2 - k)
                else:
                    g.clk += 20


def force_issue(g, tags):
    while any(k == "vm" and tg in tags for f in g.q for k, _, tg in f):
        g.burst(1)


def sync(g, vmt, lgt=None):
    a = g.a
    force_issue(g, vmt)
    if lgt == "all":
        assert not g.q2
        a.wait_lg()
    elif lgt:
        assert not any(tg in lgt for f in g.q2 for _, _, tg in f), lgt
        a.wait_lg(lgt)
    a.wait_vm(vmt)
    a("s_barrier")


def gemm_seq(g, acc, frags, gates, need_tr, key, head=None, each0=None):
    a = g.a
    AH, NS = 8, 12

    def rd(n):
        t, i = frags[n]
        base = g.vXA + i if t < 16 else g.vXA + 4 + i
        a.lds("ds_read_b128 %s, v%d offset:%d" % (vr(g.vXF + 4 * (n % NS), 4), base, (t & 15) * 4096), ("xf", n))
    for n in range(min(AH, len(frags))):
        rd(n)
    if head:
        head()
    waited = -1
    for n, (t, i) in enumerate(frags):
        x = vr(g.vXF + 4 * (n % NS), 4)
        wn = "w3" if key == "a" else "w4"
        seq = [(vr(acc + 16 * c + 4 * i, 4), wreg(g, wn, t, c)) for c in range(2)]
        if i == 0:
            seq.append((vr(acc + 32, 4), wreg(g, wn, t, 2)))
        tags = []
        if n > waited:
            waited = min(n + (1 if n == 0 else 3), len(frags) - 1)
            tags.append(("xf", waited))
            if each0:
                for n2 in range(n, waited + 1):
                    if frags[n2][1] == 0:
                        each0(frags[n2][0], g.vXF + 4 * (n2 % NS))
        if need_tr:
            while any(tg == ("trb", t) for f in g.q2 for _, _, tg in f):
                g.fill_lds(1)
            tags.append(("trb", t))
        a.wait_lg(tags)
        rdm = 0
        for m, (d, A) in enumerate(seq):
            a("%s %s, %s, %s, %s" % (MFMA, d, A, x, d if t else "0"))
            if m == 0:
                g.fine("%s_%d_%d" % (key, t, i))
                if (t, i) in gates:
                    vmt, lgt, post = gates[(t, i)][:3]
                    before = len(a.lines)
                    if vmt is not None:
                        sync(g, vmt, lgt)
                    if post:
                        post()
                    if len(a.lines) > before + 1:
                        rdm = 1
                        g.clk += 16
                        continue
            lastm = m == len(seq) - 1
            if m == rdm and n + AH < len(frags):
                g.mgap([lambda: rd(n + AH)], n=1 if lastm and n == waited else 2)
            else:
                g.mgap(n=1 if lastm and n == waited else 2)


def full(t0, t1):
    return [(t, i) for t in range(t0, t1) for i in range(4)]


def build(opts, probe=None):
    g = G(opts)
    a = g.a
    g.slow = []
    g.vLANE = g.v()
    g.vL16 = g.v()
    g.vSTAMP = g.v()
    g.vT = [g.v() for _ in range(12)]
    g.vEP = g.v(2)
    g.vW12 = g.v()
    g.vTR12 = g.v(3)
    g.vXD = g.v()
    g.vXR = g.v(2)
    g.vRC = g.vXR
    g.vWB = g.v(10)
    g.vTRB = g.v(6)
    g.vXA = g.v(8)
    g.vRA = g.v(2)
    g.vOA = g.v(2)
    g.vSA = g.v(4)
    g.vONES = g.v(4, 4)
    g.vCA = g.v(4)
    g.vPL = g.v(2)
    g.vXF = g.v(48, 4)
    g.vACC = g.v(36, 4)
    g.vCS = g.v(12, 4)
    g.vAB = g.v(16, 4)
    g.vWF = g.v(72, 4)
    T = g.vT
    L = g.vLANE
    acc, cs = g.vACC, g.vCS
    Lend, Lwork, Lhelp, Lmlp = "L_end", "L_work", "L_help", "L_mlp"
    NOWN = g.opt("nown", 5)
    D = g.vXF

    a("s_cmp_ge_u32 s2, 256")
    a("s_cbranch_scc1 %s" % Lend)
    if g.stamps:
        a("s_memrealtime s[64:65]")
    for i, n in enumerate(["x", "w1", "w2", "w3", "w4", "out", "dbg", "ws"]):
        a("s_load_dwordx2 s[%d:%d], s[0:1], %d" % (SRD[n], SRD[n] + 1, 8 * i))
    a("v_lshrrev_b32 v%d, 6, v0" % T[0])
    a("v_and_b32 v%d, 63, v0" % L)
    a("v_readfirstlane_b32 %s, v%d" % (sW, T[0]))
    if "teamshift" in opts:
        a("s_lshr_b32 %s, s2, 5" % sK)
        a("s_and_b32 %s, s2, 31" % sJ)
    else:
        a("s_and_b32 %s, s2, 7" % sK)
        a("s_lshr_b32 %s, s2, 3" % sJ)
    a("s_getpc_b64 s[4:5]")
    a("L_pc:")
    a("s_lshl_b32 %s, %s, 2" % (sT0, sJ))
    a("s_add_u32 %s, %s, %s" % (sT0, sT0, sW))
    a("s_lshl_b32 %s, %s, 8" % (sT0, sT0))
    a("v_lshl_add_u32 v%d, v%d, 7, %s" % (T[0], L, sT0))
    a("v_min_u32 v%d, L_end-L_pc, v%d" % (T[0], T[0]))
    a("s_mov_b64 exec, 3")
    a("global_load_dword v%d, v%d, s[4:5]" % (g.vEP, T[0]))
    a("s_mov_b64 exec, -1")
    for n in ("x", "w1"):
        a("s_mov_b32 s%d, %d" % (SRD[n] + 2, SIZES[n]))
        a("s_mov_b32 s%d, 0x20000" % (SRD[n] + 3))
    a("s_lshl_b32 %s, %s, 10" % (sW10, sW))
    if g.stamps:
        a("v_mov_b32 v%d, 0" % g.vSTAMP)
    a("s_cmp_lt_u32 %s, 18" % sJ)
    a("s_cbranch_scc1 %s" % Lwork)
    a("s_sub_u32 %s, %s, 18" % (sT0, sJ))
    a("s_mul_i32 %s, %s, 14" % (sT1, sW))
    a("s_add_u32 %s, %s, %s" % (sST[1], sT0, sT1))
    a("v_lshlrev_b32 v%d, 7, v%d" % (T[8], L))
    a("s_lshl_b32 %s, %s, 13" % (sST[2], sST[1]))
    a("s_add_u32 %s, %s, %d" % (sT0, sST[2], 2 * NOWN * 36864))
    if "r1w2" in opts:
        a("s_mov_b32 s%d, %d" % (SRD["w2"] + 2, SIZES["w2"]))
        a("s_mov_b32 s%d, 0x20000" % (SRD["w2"] + 3))
        a("s_add_u32 %s, %s, %d" % (sT1, sST[2], 20 * 8192))
        a("s_cmp_ge_u32 %s, 36" % sST[1])
        a("s_cselect_b32 %s, %s, 0x7fffffff" % (sT1, sT1))
    a("s_waitcnt lgkmcnt(0)")
    a("buffer_load_dword v%d, v%d, %s, %s offen" % (D, T[8], srd("w1"), sT0))
    if "r1w2" in opts:
        a("buffer_load_dword v%d, v%d, %s, %s offen" % (D + 9, T[8], srd("w2"), sT1))
    a("s_branch %s" % Lhelp)

    def common_setup():
        for n in ("ws", "w2", "w3", "w4", "out", "dbg"):
            a("s_mov_b32 s%d, %d" % (SRD[n] + 2, SIZES[n]))
            a("s_mov_b32 s%d, 0x20000" % (SRD[n] + 3))
        a("v_lshlrev_b32 v%d, 4, v%d" % (g.vL16, L))
        a("s_lshr_b32 %s, %s, 2" % (sM, sJ))
        a("s_and_b32 %s, %s, 3" % (sQ, sJ))
        a("s_mul_i32 %s, %s, 4608" % (sWB, sW))
        a("s_lshl_b32 %s, %s, %d" % (sT0, sM, FLS))
        a("s_lshl_b32 %s, %s, %d" % (sT1, sK, FLS))
        a("v_mov_b32 v%d, %s" % (T[0], sT0))
        a("v_mov_b32 v%d, %s" % (T[1], sT1))
        a.vmem("buffer_load_dword v%d, v%d, %s, 0 offen sc1" % (g.vEP, T[0], srd("ws")), "ep")
        a.vmem("buffer_load_dword v%d, v%d, %s, 0 offen sc1" % (g.vEP + 1, T[1], srd("ws")), "ep")

    def setup2():
        a("s_lshl_b32 %s, %s, 3" % (sWG, sJ))
        a("s_add_u32 %s, %s, %s" % (sWG, sWG, sK))
        a("s_getreg_b32 %s, hwreg(HW_REG_XCC_ID)" % sXCC)
        a("s_and_b32 %s, %s, 7" % (sXCC, sXCC))
        a("s_cmp_eq_u32 %s, 0" % sW)
        a("s_cselect_b32 s74, 1, 0")
        a("s_cmp_eq_u32 %s, 0" % sW)
        a("s_cselect_b64 %s, -1, 0" % sW0F)
        a("s_mov_b32 s75, 0")
        for i in range(4):
            a("v_mov_b32 v%d, 0x3f803f80" % (g.vONES + i))

    def epochs():
        a.wait_vm("ep")
        a("v_readfirstlane_b32 %s, v%d" % (sNM, g.vEP))
        a("v_readfirstlane_b32 %s, v%d" % (sNK, g.vEP + 1))
        a("s_add_u32 %s, %s, 1" % (sNM, sNM))
        a("s_add_u32 %s, %s, 1" % (sNK, sNK))

    def wbig_setup():
        t0, t1, t2 = T[:3]
        a("s_and_b32 %s, %s, 1" % (sT0, sW))
        a("s_lshl_b32 %s, %s, 2" % (sT0, sT0))
        a("s_lshr_b32 %s, %s, 1" % (sT1, sW))
        a("s_lshl_b32 %s, %s, 5" % (sT1, sT1))
        a("s_add_u32 %s, %s, %s" % (sT0, sT0, sT1))
        a("s_mul_i32 %s, %s, 288" % (sT2, sQ))
        a("s_mul_i32 %s, %s, 1152" % (sT1, sK))
        a("s_add_u32 %s, %s, %s" % (sT1, sT1, sT2))
        a("s_mul_i32 %s, %s, 9216" % (sW3B, sT0))
        a("s_add_u32 %s, %s, %s" % (sW3B, sW3B, sT1))
        a("s_mul_i32 %s, %s, %d" % (sT1, sK, 576 * 1152))
        a("s_add_u32 %s, %s, %s" % (sT1, sT1, sT2))
        a("s_mul_i32 %s, %s, %d" % (sW49, sW, 144 * 1152))
        a("s_add_u32 %s, %s, %s" % (sW49, sW49, sT1))
        a("s_add_u32 %s, %s, %d" % (sW49, sW49, 128 * 1152))
        a("s_mul_i32 %s, %s, %d" % (sT0, sW, 16 * 1152))
        a("s_add_u32 %s, %s, %s" % (sT1, sT1, sT0))
        for i in range(4):
            a("s_add_u32 %s, %s, %d" % (sT0, sQ, i))
            a("s_and_b32 %s, %s, 3" % (sT0, sT0))
            a("s_mul_i32 %s, %s, %d" % (sT0, sT0, 144 * 1152))
            a("s_add_u32 %s, %s, %s" % (sW4C[i], sT0, sT1))
        a("s_mov_b32 %s, -288" % sT0)
        a("s_movk_i32 %s, 9216" % sT1)
        a("s_movk_i32 %s, 1152" % sT2)
        a("v_mul_u32_u24 v%d, 3641, v%d" % (t2, L))
        for i in range(5):
            u0 = 0 if i == 0 else 32 + 64 * (i - 1)
            if i:
                a("v_add_u32 v%d, %d, v%d" % (t1, u0 * 3641, t2))
            a("v_lshrrev_b32 v%d, 16, v%d" % (t1, t1 if i else t2))
            a("v_mad_i32_i24 v%d, v%d, %s, v%d" % (t0, t1, sT0, g.vL16))
            a("v_mad_u32_u24 v%d, v%d, %s, v%d" % (g.vWB + 5 + i, t1, sT2, t0))
            a("v_and_b32 v%d, 12, v%d" % (g.vWB + i, t1))
            a("v_add_u32 v%d, v%d, v%d" % (t1, t1, g.vWB + i))
            a("v_mad_u32_u24 v%d, v%d, %s, v%d" % (g.vWB + i, t1, sT1, t0))
        a("v_lshrrev_b32 v%d, 2, v%d" % (t0, L))
        a("v_mul_u32_u24 v%d, 288, v%d" % (t0, t0))
        a("v_and_b32 v%d, 3, v%d" % (t1, L))
        a("v_lshl_add_u32 v%d, v%d, 3, v%d" % (t0, t1, t0))
        a("s_lshl_b32 %s, %s, 6" % (sT0, sW))
        a("v_add_u32 v%d, %s, v%d" % (g.vTRB, sT0, t0))
        a("v_add_u32 v%d, 256, v%d" % (g.vTRB + 3, t0))
        for i in (1, 2):
            a("v_add_u32 v%d, %d, v%d" % (g.vTRB + i, 3 * SLOT * i, g.vTRB))
            a("v_add_u32 v%d, %d, v%d" % (g.vTRB + 3 + i, 3 * SLOT * i, g.vTRB + 3))

    def mlp_setup():
        a("v_and_b32 v%d, 15, v%d" % (T[2], L))
        a("v_lshlrev_b32 v%d, 4, v%d" % (T[2], T[2]))
        for i in range(4):
            a("s_add_u32 %s, %s, %d" % (sT0, sW, i))
            a("s_and_b32 %s, %s, 3" % (sT0, sT0))
            a("s_lshl_b32 %s, %s, 10" % (sT1, sT0))
            a("v_add_u32 v%d, %s, v%d" % (g.vXA + i, sT1, g.vL16))
            a("v_add_u32 v%d, 0x10000, v%d" % (g.vXA + 4 + i, g.vXA + i))
            a("s_lshl_b32 %s, %s, 8" % (sT1, sT0))
            a("s_add_u32 %s, %s, %d" % (sT1, sT1, LST))
            a("v_add_u32 v%d, %s, v%d" % (g.vSA + i, sT1, T[2]))
        a("s_lshl_b32 %s, %s, 3" % (sH2A, sK))
        a("s_add_u32 %s, %s, %s" % (sH2A, sH2A, sM))
        a("s_mul_i32 %s, %s, 73728" % (sH2A, sH2A))
        a("s_add_u32 %s, %s, %d" % (sH2A, sH2A, H2A))
        a("s_mul_i32 %s, %s, 144" % (sT0, sQ))
        a("s_lshl_b32 %s, %s, 5" % (sT1, sW))
        a("s_add_u32 %s, %s, %s" % (sT1, sT1, sT0))
        a("s_add_u32 %s, %s, 128" % (sT0, sT0))
        a("s_lshr_b32 %s, %s, 1" % (sT2, sK))
        a("s_lshl_b32 %s, %s, 10" % (sT2, sT2))
        a("s_and_b32 %s, %s, 1" % (sT3, sK))
        a("s_lshl_b32 %s, %s, 7" % (sT3, sT3))
        a("s_add_u32 %s, %s, %s" % (sT2, sT2, sT3))
        a("v_and_b32 v%d, 7, v%d" % (T[3], L))
        for i in range(2):
            if i == 0:
                a("v_lshrrev_b32 v%d, 3, v%d" % (T[0], L))
                a("v_lshl_add_u32 v%d, v%d, 2, %s" % (T[0], T[0], sT1))
            else:
                a("v_bfe_u32 v%d, v%d, 3, 2" % (T[0], L))
                a("v_lshl_add_u32 v%d, v%d, 2, %s" % (T[0], T[0], sT0))
                a("v_lshrrev_b32 v%d, 5, v%d" % (T[1], L))
                a("v_lshl_add_u32 v%d, v%d, 1, v%d" % (T[0], T[1], T[0]))
            a("v_mul_u32_u24 v%d, 1152, v%d" % (T[1], T[3]))
            a("v_lshl_add_u32 v%d, v%d, 1, v%d" % (g.vOA + i, T[0], T[1]))
            a("v_lshrrev_b32 v%d, 5, v%d" % (T[1], T[0]))
            a("v_lshlrev_b32 v%d, 12, v%d" % (T[1], T[1]))
            a("v_bfe_u32 v%d, v%d, 3, 2" % (T[2], T[0]))
            a("v_lshl_add_u32 v%d, v%d, 8, v%d" % (T[1], T[2], T[1]))
            a("v_and_b32 v%d, 7, v%d" % (T[2], T[0]))
            a("v_lshl_add_u32 v%d, v%d, 1, v%d" % (T[1], T[2], T[1]))
            a("v_lshl_add_u32 v%d, v%d, 4, v%d" % (T[1], T[3], T[1]))
            a("v_add_u32 v%d, %s, v%d" % (g.vRA + i, sT2, T[1]))

    def f2_setup():
        a("s_lshl_b32 %s, %s, %d" % (sU1, sM, FLS))
        a("s_add_u32 %s, %s, %d" % (sU1, sU1, FL + FL_F2))
        a("s_mul_i32 %s, %s, 73728" % (sX1O, sM))
        a("s_add_u32 %s, %s, %d" % (sX1O, sX1O, X1))
        a("s_mov_b32 %s, 0" % sBAT)
        a("v_and_b32 v%d, 15, v%d" % (g.vRC + 1, L))
        a("v_lshlrev_b32 v%d, 4, v%d" % (g.vRC + 1, g.vRC + 1))
        a("v_lshrrev_b32 v%d, 4, v%d" % (g.vRC, L))
        a("v_lshl_add_u32 v%d, v%d, 9, v%d" % (g.vRC, g.vRC, g.vRC + 1))
        a("v_add_u32 v%d, 4096, v%d" % (g.vRC + 1, g.vRC + 1))
        a("s_lshr_b32 %s, %s, 1" % (sT0, sW))
        a("s_mul_i32 %s, %s, %d" % (sT0, sT0, 9 * 512))
        a("s_and_b32 %s, %s, 1" % (sT1, sW))
        a("s_lshl_b32 %s, %s, 8" % (sT1, sT1))
        a("s_add_u32 %s, %s, %s" % (sT0, sT0, sT1))
        a("s_add_u32 %s, %s, %s" % (sHSO, sU1, sT0))
        a("v_min_u32 v%d, 17, v%d" % (g.vPL, L))
        a("v_lshlrev_b32 v%d, 9, v%d" % (g.vPL, g.vPL))

    def f2_early():
        a("s_mov_b64 exec, %s" % sW0F)
        a("buffer_load_dword v%d, v%d, %s, %s offen sc1" % (g.vPL + 1, g.vPL, srd("ws"), sU1))
        a("s_mov_b64 exec, -1")

    a(Lwork + ":")
    a("s_cmp_ge_u32 %s, 9" % sJ)
    a("s_cselect_b32 %s, 1, 0" % sBL)
    a("s_mul_i32 %s, %s, 9" % (sST[2], sBL))
    a("s_sub_u32 %s, %s, %s" % (sCB, sJ, sST[2]))
    a("s_mul_i32 %s, %s, %d" % (sST[0], sBL, NOWN))
    a("s_lshl_b32 %s, %s, 1" % (sT0, sK))
    a("s_add_u32 %s, %s, %s" % (sT0, sT0, sBL))
    a("s_mul_i32 %s, %s, 36864" % (sBAT, sT0))
    a("s_lshl_b32 %s, %s, 3" % (sT1, sW))
    a("v_lshrrev_b32 v%d, 3, v%d" % (T[0], L))
    a("v_add_u32 v%d, %s, v%d" % (T[0], sT1, T[0]))
    a("v_bfe_u32 v%d, v%d, 1, 3" % (T[1], T[0]))
    a("v_and_b32 v%d, 7, v%d" % (T[2], L))
    a("v_xor_b32 v%d, v%d, v%d" % (T[1], T[1], T[2]))
    a("v_mul_u32_u24 v%d, 1152, v%d" % (T[3], T[0]))
    a("v_lshl_add_u32 v%d, v%d, 4, v%d" % (g.vXD, T[1], T[3]))
    a("s_and_b32 %s, %s, 1" % (sT1, sW))
    a("s_lshl_b32 %s, %s, 2" % (sT1, sT1))
    a("v_lshrrev_b32 v%d, 3, v%d" % (T[1], L))
    a("v_and_b32 v%d, 2, v%d" % (T[1], T[1]))
    a("v_or_b32 v%d, %s, v%d" % (T[1], sT1, T[1]))
    a("v_xor_b32 v%d, v%d, v%d" % (T[1], T[1], T[2]))
    a("v_lshl_add_u32 v%d, v%d, 4, v%d" % (T[1], T[1], T[3]))
    a("s_lshl_b32 %s, %s, 7" % (sT1, sCB))
    a("v_add_u32 v%d, %s, v%d" % (g.vW12, sT1, T[1]))
    a("s_lshl_b32 %s, %s, 12" % (sT0, sCB))
    a("s_add_u32 m0, %s, %s" % (sT0, sW10))
    a("s_add_u32 %s, %s, %s" % (sT2, sT1, sBAT))
    a("s_waitcnt lgkmcnt(0)")
    g.stamp(0)
    a.vmem("buffer_load_dwordx4 v%d, %s, %s offen lds" % (g.vXD, srd("x"), sT2), "x")
    q_w12(g, "w1", sST[0], NOWN, LB, "w1a")
    g.burst()
    a("s_sub_u32 %s, %d, %s" % (sST[0], NOWN, sST[0]))
    a("s_sub_u32 %s, 9, %s" % (sST[3], sST[2]))
    common_setup()
    g.q.append(I("s_mov_b32 m0, %s" % sW10))
    for kb in range(9):
        g.q.append(VM("buffer_load_dwordx4 v%d, %s, %s offen offset:%d lds" % (g.vXD, srd("x"), sBAT, kb * 128), "x"))
        if kb < 8:
            g.q.append(I("s_add_u32 m0, m0, %d" % (4096 - 128)))
    q_w12(g, "w1", sST[0], NOWN, LB, "w1a")

    def p_setup():
        setup2()
        a("v_lshrrev_b32 v%d, 4, v%d" % (T[0], L))
        a("v_bfe_u32 v%d, v%d, 2, 2" % (T[1], L))
        a("v_lshl_add_u32 v%d, v%d, 3, v%d" % (T[0], T[0], T[1]))
        a("v_bfe_u32 v%d, v%d, 3, 2" % (T[1], L))
        a("v_xor_b32 v%d, %s, v%d" % (T[1], sW, T[1]))
        a("v_lshlrev_b32 v%d, 5, v%d" % (T[1], T[1]))
        a("v_lshl_add_u32 v%d, v%d, 7, v%d" % (T[0], T[0], T[1]))
        a("v_and_b32 v%d, 3, v%d" % (T[1], L))
        a("v_lshl_add_u32 v%d, v%d, 3, v%d" % (T[0], T[1], T[0]))
        a("v_add_u32 v%d, %d, v%d" % (g.vTR12, LA2, T[0]))
        a("v_add_u32 v%d, %d, v%d" % (g.vTR12 + 1, LB, T[0]))
        a("v_add_u32 v%d, %d, v%d" % (g.vTR12 + 2, LB + 36864, T[0]))
        a("v_and_b32 v%d, 15, v%d" % (T[0], L))
        a("v_bfe_u32 v%d, v%d, 1, 3" % (T[1], L))
        a("v_lshrrev_b32 v%d, 4, v%d" % (T[2], L))
        a("v_xor_b32 v%d, v%d, v%d" % (T[1], T[1], T[2]))
        a("v_lshlrev_b32 v%d, 4, v%d" % (T[1], T[1]))
        a("v_lshl_add_u32 v%d, v%d, 7, v%d" % (g.vXR, T[0], T[1]))
        a("v_xor_b32 v%d, 64, v%d" % (g.vXR + 1, g.vXR))
        a("s_lshl_b32 %s, %s, 2" % (sT0, sCB))
        a("s_add_u32 %s, %s, %s" % (sT0, sT0, sW))
        a("s_mov_b32 %s, 1" % sT1)
        a("s_cmp_ge_u32 %s, 9" % sT0)
        a("s_cselect_b32 %s, -1, %s" % (sT1, sT1))
        a("s_cmp_ge_u32 %s, 18" % sT0)
        a("s_cselect_b32 %s, 2, %s" % (sT1, sT1))
        a("s_cmp_ge_u32 %s, 27" % sT0)
        a("s_cselect_b32 %s, -2, %s" % (sT1, sT1))
        a("v_and_b32 v%d, 31, v%d" % (T[0], L))
        a("v_add_u32 v%d, %s, v%d" % (T[0], sT1, T[0]))
        a("v_cmp_gt_u32 %s, 32, v%d" % (sSHM, T[0]))
        a("v_and_b32 v%d, 15, v%d" % (T[1], T[0]))
        a("v_bfe_u32 v%d, v%d, 4, 1" % (T[0], T[0]))
        a("v_lshlrev_b32 v%d, 10, v%d" % (T[0], T[0]))
        a("v_lshl_add_u32 v%d, v%d, 4, v%d" % (T[0], T[1], T[0]))
        a("v_lshrrev_b32 v%d, 5, v%d" % (T[1], L))
        a("v_lshl_add_u32 v%d, v%d, 8, v%d" % (T[9], T[1], T[0]))
        a("v_and_b32 v%d, 15, v%d" % (T[2], L))
        a("v_bfe_u32 v%d, v%d, 4, 1" % (T[0], L))
        a("v_lshlrev_b32 v%d, 10, v%d" % (T[0], T[0]))
        a("v_lshl_add_u32 v%d, v%d, 4, v%d" % (T[0], T[2], T[0]))
        a("v_lshl_add_u32 v%d, v%d, 8, v%d" % (T[10], T[1], T[0]))
        a("s_lshr_b32 %s, %s, 1" % (sT1, sT0))
        a("s_and_b32 %s, %s, 1" % (sT2, sT0))
        a("s_lshl_b32 %s, %s, 9" % (sT2, sT2))
        a("s_add_u32 %s, %s, %s" % (sU0, sST[2], sT1))
        a("s_sub_u32 %s, %s, 18" % (sU1, sU0))
        a("s_cmp_ge_u32 %s, 18" % sU0)
        a("s_cselect_b32 %s, %s, %s" % (sU0, sU1, sU0))
        a("s_lshl_b32 %s, %s, 11" % (sHSO, sU0))
        a("s_add_u32 %s, %s, %s" % (sHSO, sHSO, sT2))
        a("s_add_u32 %s, %s, %s" % (sHSO, sHSO, sBAT))
        a("s_add_u32 %s, %s, %d" % (sHSO, sHSO, HS))
        a("s_lshl_b32 %s, %s, 12" % (sX1O, sT1))
        a("s_add_u32 %s, %s, %s" % (sX1O, sX1O, sT2))
        a("s_lshl_b32 %s, %s, 11" % (sT2, sBL))
        a("s_add_u32 %s, %s, %s" % (sX1O, sX1O, sT2))
        a("s_mul_i32 %s, %s, 73728" % (sT2, sK))
        a("s_add_u32 %s, %s, %s" % (sX1O, sX1O, sT2))
        a("s_add_u32 %s, %s, %d" % (sX1O, sX1O, X1))
        a("v_and_b32 v%d, 15, v%d" % (T[4], L))
        a("v_bfe_u32 v%d, v%d, 1, 3" % (T[5], L))
        a("v_lshrrev_b32 v%d, 5, v%d" % (T[6], L))
        a("s_lshl_b32 %s, %s, 1" % (sT0, sW))
        a("v_add_u32 v%d, %s, v%d" % (T[6], sT0, T[6]))
        a("v_xor_b32 v%d, v%d, v%d" % (T[5], T[5], T[6]))
        a("v_lshlrev_b32 v%d, 4, v%d" % (T[5], T[5]))
        a("v_lshl_add_u32 v%d, v%d, 7, v%d" % (T[4], T[4], T[5]))
        a("v_bfe_u32 v%d, v%d, 4, 1" % (T[5], L))
        a("v_lshl_add_u32 v%d, v%d, 3, v%d" % (T[4], T[5], T[4]))
        a("s_lshl_b32 %s, %s, 12" % (sT0, sCB))
        a("v_add_u32 v%d, %s, v%d" % (T[11], sT0, T[4]))
        wbig_setup()
        a("v_and_b32 v%d, 0x38, v%d" % (T[8], L))
        a("s_lshl_b32 %s, %s, 7" % (sT0, sW))
        a("s_add_u32 %s, %s, %d" % (sT0, sT0, LST))
        a("v_lshl_add_u32 v%d, v%d, 1, %s" % (T[8], T[8], sT0))
        a("v_add_u32 v%d, %s, v%d" % (T[0], sW10, g.vL16))
        for i in range(4):
            a("v_mov_b32 v%d, 0" % (T[4 + i]))
    g.clk = -g.opt("r2wait", 0)
    gap, g.gap = g.gap, g.opt("r2gap", 48)
    g.weave(g.capture(p_setup))
    g.stamp(31)
    g.burst()
    q_w12(g, "w1", 2 * NOWN, 18 - 2 * NOWN, LB, "w1b")
    g.stamp(26)
    a.wait_vm("x")
    g.stamp(27)
    for kb in range(9):
        a.lds("ds_read_b128 %s, v%d offset:%d" % (vr(g.vXF + 4 * kb, 4), T[0], LA + kb * 4096), ("st", kb))
    g.burst(2)
    g.gap = 32
    for kb in range(9):
        a.wait_lg(("st", kb))
        for i in range(4 * kb, 4 * kb + 4):
            a("v_dot2c_f32_bf16 v%d, v%d, v%d" % (T[4 + (i & 1)], g.vXF + i, g.vONES))
            a("v_dot2c_f32_bf16 v%d, v%d, v%d" % (T[6 + (i & 1)], g.vXF + i, g.vXF + i))
        g.fill_vm(3, 32)
    g.burst()
    g.gap = gap
    a("v_and_b32 v%d, 15, v%d" % (T[0], L))
    a("v_lshlrev_b32 v%d, 4, v%d" % (T[0], T[0]))
    a("v_add_u32 v%d, %d, v%d" % (T[0], LST, T[0]))
    a("v_add_f32 v%d, v%d, v%d" % (g.vAB, T[4], T[5]))
    a("v_add_f32 v%d, v%d, v%d" % (g.vAB + 1, T[6], T[7]))
    g.stamp(28)
    sync(g, ["w1a"])
    g.stamp(1)

    def gemm_small(xaddr, waddr, withcs, gates, hooks={}):
        AH = 3

        def reads(t):
            if t >= 18:
                return []
            r = []
            if waddr(t) is not None:
                r += [f[0][1] for f in tr12(g, t, waddr(t))]
            for mt in range(2):
                base, off = xaddr(t, mt)
                r.append("ds_read_b128 %s, v%d offset:%d" % (vr(g.vXF + 8 * (t % 6) + 4 * mt, 4), base, off))
            return [(lambda x=x: a.lds(x, ("xs", t))) for x in r]
        for t in range(AH):
            for f in reads(t):
                f()
        for t in range(18):
            w = vr(g.vWF + 4 * t, 4)
            a.wait_lg(("xs", t))
            g.fine("p%d_%d" % (1 if withcs else 2, t))
            r = reads(t + AH)
            parts = ([r[2:3], r[0:2], r[3:4]] if withcs else [r[0:1], r[1:2]])
            for m in range(len(parts)):
                if m < 2:
                    d = vr(acc + 4 * m, 4)
                    a("%s %s, %s, %s, %s" % (MFMA, d, w, vr(g.vXF + 8 * (t % 6) + 4 * m, 4), d if t else "0"))
                else:
                    d = vr(cs, 4)
                    a("%s %s, %s, %s, %s" % (MFMA, d, w, vr(g.vONES, 4), d if t else "0"))
                if m == 0:
                    if t + AH in gates:
                        sync(g, gates[t + AH][0])
                        if gates[t + AH][1]:
                            gates[t + AH][1]()
                    if t in hooks:
                        hooks[t]()
                n = 2
                if m == len(parts) - 1 and not (withcs and len(g.q3) > 14 - t):
                    n = 1
                g.mgap(parts[m], n=max(n, len(parts[m])), cyc=18)

    def chain():
        for mod in ("quad_perm:[1,0,3,2]", "quad_perm:[2,3,0,1]", "row_half_mirror"):
            a("v_add_f32_dpp v%d, v%d, v%d %s row_mask:0xf bank_mask:0xf" % (g.vAB, g.vAB, g.vAB, mod))
            a("v_add_f32_dpp v%d, v%d, v%d %s row_mask:0xf bank_mask:0xf" % (g.vAB + 1, g.vAB + 1, g.vAB + 1, mod))
        ln_scalars(g, g.vAB)
        epochs()
    g.q3 = g.capture(chain)
    q_w12(g, "w2", sST[2], 9, LA2, "w2", fixed=True)
    a.lds("ds_read_b64 %s, v%d offset:%d" % (vr(g.vAB + 8, 2), T[11], LA), "res")
    a.lds("ds_read_b64 %s, v%d offset:%d" % (vr(g.vAB + 10, 2), T[11], LA + 2048), "res")
    g.any3 = True
    g.gap = g.opt("p1gap", 64)
    g.clk = g.gap - g.opt("p1wait", 300)

    def st_write():
        g.fill_alu(100)
        a.lds("ds_write_b128 v%d, %s" % (T[8], vr(g.vAB, 4)), "stw")

    def st_read():
        sync(g, [], "all")
        a.lds("ds_read_b128 %s, v%d" % (vr(g.vAB, 4), T[0]), "ab")
        a.lds("ds_read_b128 %s, v%d offset:256" % (vr(g.vAB + 4, 4), T[0]), "ab")
        q_w12(g, "w2", sST[3], 9, LB, "w2b", fixed=True)
    assert 2 * NOWN == 10
    gemm_small(lambda t, mt: (g.vXR + (t & 1), LA + (t >> 1) * 4096 + mt * 2048), lambda t: LB + 4096 * t, True,
               {2 * NOWN: (["w1b"], None)}, {15: st_write, 16: st_read})
    g.any3 = False
    g.gap = gap
    force_issue(g, ["w2"])
    g.burst(g.opt("w2e", 0))
    a.wait_lg()
    g.stamp(24)
    ln_gelu(g, [(acc + 4 * mt + h, cs + h, g.vAB + 4 * mt) for mt in range(2) for h in (0, 2)], g.vXF, True)
    P = g.vXF + 8
    for mt in range(2):
        for h in range(2):
            a("v_cvt_pk_bf16_f32 v%d, v%d, v%d" % (P + 2 * mt + h, acc + 4 * mt + 2 * h, acc + 4 * mt + 2 * h + 1))
    a("v_permlane16_swap_b32 v%d, v%d" % (P, P + 2))
    a("v_permlane16_swap_b32 v%d, v%d" % (P + 1, P + 3))
    for i in range(4):
        a("v_cndmask_b32 v%d, 0, v%d, %s" % (P + i, P + i, sSHM))
    a.vmem("buffer_store_dwordx4 %s, v%d, %s, %s offen" % (vr(P, 4), T[9], srd("ws"), sHSO), "hs")
    g.stamp(2)
    W3SLOT = [6, 7, 0, 1, 4, 5, 0, 6, 7]
    NH = g.opt("nh", 2)
    assert NH >= 2
    for st_ in range(NH):
        q_stage(g, "w3", st_, W3SLOT[st_])
    g.burst(g.opt("s01a", 6))
    a("s_mul_i32 %s, %s, 72" % (sT2, sBL))
    a("s_add_u32 %s, %s, %s" % (sT2, sT2, sK))
    a("s_lshl_b32 %s, %s, %d" % (sU0, sK, FLS))
    a("s_mul_i32 %s, %s, %d" % (sT1, sBL, 9 * 128))
    a("s_add_u32 %s, %s, %s" % (sU0, sU0, sT1))
    a("s_add_u32 %s, %s, %d" % (sU0, sU0, FL + FL_G1))
    a("s_add_u32 %s, %s, %d" % (sU1, sBAT, HS))
    a("v_add_u32 v%d, %d, v%d" % (T[8], LA2, g.vL16))
    poll_setup(g, 9, sT2)
    signal_local(g, 0x10, "hs")
    g.stamp(25)
    g.burst()
    poll_early(g)
    for t in range(9):
        g.q2 += tr12(g, t, LA2 + 4096 * t)
    g.fill_lds(100)
    a("s_lshl_b32 %s, %s, %d" % (sST[0], sK, FLS))
    a("s_lshl_b32 %s, %s, 9" % (sT1, sJ))
    a("s_add_u32 %s, %s, %s" % (sST[0], sST[0], sT1))
    a("s_add_u32 %s, %s, %d" % (sST[0], sST[0], FL + FL_F2))
    a("v_and_b32 v%d, 31, v%d" % (T[9], L))
    a("v_lshlrev_b32 v%d, 4, v%d" % (T[9], T[9]))
    a("v_add_u32 v%d, %d, v%d" % (T[9], LPS, T[9]))
    a("s_lshl_b32 %s, %s, 9" % (sT1, sW))
    a("v_add_u32 v%d, %s, v%d" % (T[11], sT1, T[9]))
    for i in range(4):
        a("v_lshlrev_b32 v%d, 16, v%d" % (g.vAB + 2 * i, g.vAB + 8 + i))
        a("v_and_b32 v%d, 0xffff0000, v%d" % (g.vAB + 2 * i + 1, g.vAB + 8 + i))
    a.wait_vm()
    a.wait_lg()
    wait_local(g, 0x10, sU0, sCB, sNK, True)
    g.stamp(3)

    q_linear(g, LA2, sU1, 9, "hsl")
    g.burst(g.opt("hspre", 9))
    for t in range(9, 18):
        g.q2 += tr12(g, t, LA2 + 4096 * t)
    g.fill_lds(100)
    H0 = g.opt("h0", 2)
    sync(g, [("hsl", H0)])
    g.stamp(4)
    for st_ in range(NH, 4):
        q_stage(g, "w3", st_, W3SLOT[st_])
    g.gap, g.extra, extra = g.opt("p2gap", 40), 0, g.extra
    g.clk = g.gap - g.opt("p2wait", 0)
    g.any3 = True
    gemm_small(lambda t, mt: (T[8], t * 2048 + mt * 1024), lambda t: None, False,
               {2 * H0 + 2: ([("hsl", 5)], None), 12: ([("hsl", 8)], None)})
    g.any3 = False
    g.gap, g.extra = gap, extra
    U = g.vXF + 16
    for i in range(4):
        a("v_cvt_pk_bf16_f32 v%d, v%d, v%d" % (P + i, acc + 2 * i, acc + 2 * i + 1))
    for i in range(4):
        a("v_lshlrev_b32 v%d, 16, v%d" % (U + 2 * i, P + i))
        a("v_and_b32 v%d, 0xffff0000, v%d" % (U + 2 * i + 1, P + i))
    for i in range(4):
        a("v_pk_add_f32 %s, %s, %s" % (vr(U + 2 * i, 2), vr(U + 2 * i, 2), vr(g.vAB + 2 * i, 2)))
    for i in (0, 2, 1, 3):
        a("v_cvt_pk_bf16_f32 v%d, v%d, v%d" % (P + i, U + 2 * i, U + 2 * i + 1))
    S = g.vAB
    a("v_mov_b32 v%d, 0" % S)
    a("v_permlane16_swap_b32 v%d, v%d" % (P, P + 2))
    a("v_permlane16_swap_b32 v%d, v%d" % (P + 1, P + 3))
    a.vmem("buffer_store_dwordx4 %s, v%d, %s, %s offen sc1" % (vr(P, 4), T[10], srd("ws"), sX1O), "x1")
    g.stamp(5)
    for i in (1, 4, 5, 6):
        a("v_mov_b32 v%d, 0" % (S + i))
    for i in range(4):
        a("v_dot2c_f32_bf16 v%d, v%d, v%d" % (S, P + i, g.vONES))
        a("v_dot2c_f32_bf16 v%d, v%d, v%d" % (S + 1, P + i, P + i))
    a("v_xor_b32 v%d, v%d, v%d" % (S + 2, P, P + 1))
    a("v_bitop3_b32 v%d, v%d, v%d, v%d bitop3:0x96" % (S + 2, S + 2, P + 2, P + 3))
    for i in range(3):
        a("v_permlane32_swap_b32 v%d, v%d" % (S + i, S + 4 + i))
    a("v_pk_add_f32 %s, %s, %s" % (vr(S, 2), vr(S, 2), vr(S + 4, 2)))
    a("v_xor_b32 v%d, v%d, v%d" % (S + 2, S + 2, S + 6))
    a("s_mov_b32 exec_hi, 0")
    a.lds("ds_write_b128 v%d, %s" % (T[11], vr(S, 4)), "ps")
    a("s_mov_b32 exec_hi, -1")
    sync(g, ["x1"] if "x1drain" in opts else [], "all")
    Lf = a.label("f2")
    a("s_cmp_lg_u32 %s, 0" % sW)
    a("s_cbranch_scc1 %s" % Lf)
    for i in range(4):
        a("ds_read_b128 %s, v%d offset:%d" % (vr(U + 4 * i, 4), T[9], 512 * i))
    a("v_mov_b32 v%d, %s" % (S, sNK))
    a("s_waitcnt lgkmcnt(0)")
    a("v_pk_add_f32 %s, %s, %s" % (vr(U, 2), vr(U, 2), vr(U + 4, 2)))
    a("v_pk_add_f32 %s, %s, %s" % (vr(U + 8, 2), vr(U + 8, 2), vr(U + 12, 2)))
    a("v_bitop3_b32 v%d, v%d, v%d, v%d bitop3:0x96" % (S + 3, U + 2, U + 6, U + 10))
    a("v_add_f32 v%d, v%d, v%d" % (S + 1, U, U + 8))
    a("v_add_f32 v%d, v%d, v%d" % (S + 2, U + 1, U + 9))
    a("v_bitop3_b32 v%d, v%d, v%d, %s bitop3:0x96" % (S + 3, S + 3, U + 14, sNK))
    a("s_mov_b32 exec_hi, 0")
    a("buffer_store_dwordx4 %s, v%d, %s, %s offen sc1" % (vr(S, 4), g.vL16, srd("ws"), sST[0]))
    a("s_mov_b32 exec_hi, -1")
    a(Lf + ":")
    g.stamp(20)
    for st_ in (4, 5):
        q_stage(g, "w3", st_, W3SLOT[st_])
    q_stage(g, "w3", 6, 2)
    g.burst(g.opt("x1dma", 8))
    for st_ in range(NH):
        q_tr(g, "w3", st_)
    g.fill_lds(100)
    g.gap, g.extra = 32, 0
    g.clk = g.gap
    g.weave(g.capture(mlp_setup) + g.capture(f2_setup))
    force_issue(g, [("w3", 5)])
    sync(g, [("w3", 3)], "all")
    g.stamp(21)
    for st_ in (7, 8):
        q_stage(g, "w3", st_, W3SLOT[st_])
    g.burst(5)
    for st_ in range(NH, 4):
        q_tr(g, "w3", st_)
    g.fill_lds(100)
    colsum(g, [0, 1, 2, 3])
    g.burst()
    f2_early()
    sync(g, [("w3", 6)])
    g.stamp(23)
    for st_ in (6, 4, 5):
        q_tr(g, "w3", st_)
    g.fill_lds(14)
    q2_join, g.q2 = g.q2, []
    g.gap, g.extra = gap, extra
    a("s_branch %s" % Lmlp)
    lg_join = list(a.lg)

    a(Lhelp + ":")
    a.vm = []
    a.lg = []
    g.stamp(0)
    common_setup()
    setup2()
    wbig_setup()
    mlp_setup()
    f2_setup()
    a("s_add_u32 %s, %s, %d" % (sST[3], sST[2], 56 * 8192))
    for h in range(2):
        a("s_lshl_b32 %s, %s, 6" % (sT3, sST[1]))
        if h:
            a("s_add_u32 %s, %s, 3584" % (sT3, sT3))
        a("v_add_u32 v%d, %s, v%d" % (T[0], sT3, L))
        a("v_mul_u32_u24 v%d, 7282, v%d" % (T[1], T[0]))
        a("v_lshrrev_b32 v%d, 16, v%d" % (T[1], T[1]))
        a("v_mul_u32_u24 v%d, 9, v%d" % (T[2], T[1]))
        a("v_sub_u32 v%d, v%d, v%d" % (T[0], T[0], T[2]))
        a("v_mul_u32_u24 v%d, 9216, v%d" % (T[1], T[1]))
        a("v_lshl_add_u32 v%d, v%d, 7, v%d" % (T[10 + h], T[0], T[1]))
    a("s_mul_i32 %s, %s, 1152" % (sT3, sK))
    a("s_mul_i32 %s, %s, 73728" % (sU0, sK))
    a("s_add_u32 %s, %s, %s" % (sU0, sU0, sST[2]))
    a("s_add_u32 %s, %s, %d" % (sU0, sU0, HS - 47 * 8192))
    a("s_cmp_ge_u32 %s, 47" % sST[1])
    a("s_cselect_b32 %s, %s, 0x7fffffff" % (sU0, sU0))
    epochs()
    g.stamp(1)
    if "w2touch" in opts:
        a.vmem("buffer_load_dword v%d, v%d, %s, %s offen" % (D + 1, T[8], srd("w2"), sST[2]), "touch")
        if "r1w2" in opts:
            a("s_add_u32 %s, %s, %d" % (sT0, sST[2], 76 * 8192))
        a.vmem("buffer_load_dword v%d, v%d, %s, %s offen" % (D + 2, T[8], srd("w2"), sT0 if "r1w2" in opts else sST[3]), "touch")
    a.vmem("buffer_load_dword v%d, v%d, %s, %s offen" % (D + 7, T[8], srd("ws"), sU0), "touch")
    a.vmem("buffer_load_dword v%d, v%d, %s, %s offen" % (D + 3, T[10], srd("w3"), sT3), "touch")
    a.vmem("buffer_load_dword v%d, v%d, %s, %s offen" % (D + 4, T[11], srd("w3"), sT3), "touch")
    for st_, slot in ((0, 2), (1, 3), (2, 0), (3, 1), (4, 4), (5, 5)):
        q_stage(g, "w3", st_, slot)
    g.burst(20)
    sync(g, [("w3", 1)])
    for st_ in (0, 1):
        q_tr(g, "w3", st_)
    g.fill_lds(100)
    g.burst()
    sync(g, [("w3", 3)], "all")
    for st_ in (2, 3):
        q_tr(g, "w3", st_)
    g.fill_lds(100)
    for st_, slot in ((6, 2), (7, 6), (8, 7)):
        q_stage(g, "w3", st_, slot)
    g.burst(5)
    colsum(g, [0, 1, 2, 3])
    g.burst()
    sync(g, [("w3", 6)])
    for st_ in (6, 4, 5):
        q_tr(g, "w3", st_)
    g.fill_lds(14)
    assert (a.lg == lg_join or g.stamps) and g.q2 == q2_join
    if "w4help" in opts:
        a("s_mul_i32 %s, %s, %d" % (sT0, sK, 576 * 1152))
        a("s_add_u32 %s, %s, %s" % (sT1, sT0, sST[3]))
        a("s_add_u32 %s, %s, %s" % (sT0, sT0, sST[2]))
        a("s_cmp_lt_u32 %s, 25" % sST[1])
        a("s_cselect_b32 %s, %s, 0x7fffffff" % (sT1, sT1))
        a("buffer_load_dword v%d, v%d, %s, %s offen" % (D + 5, T[8], srd("w4"), sT0))
        a("buffer_load_dword v%d, v%d, %s, %s offen" % (D + 6, T[8], srd("w4"), sT1))
    if "hpre" in opts:
        a("s_mul_i32 %s, %s, %d" % (sT0, sK, 8 * 73728))
        a("s_add_u32 %s, %s, %d" % (sT0, sT0, H2A))
        a("s_add_u32 %s, %s, %s" % (sT1, sT0, sST[2]))
        a("s_add_u32 %s, %s, %d" % (sT0, sT1, 16 * 8192))
        a("s_cmp_ge_u32 %s, 40" % sST[1])
        a("s_cselect_b32 %s, %s, 0x7fffffff" % (sT0, sT0))
        a("buffer_load_dword v%d, v%d, %s, %s offen" % (D + 7, T[8], srd("ws"), sT1))
        a("buffer_load_dword v%d, v%d, %s, %s offen" % (D + 8, T[8], srd("ws"), sT0))
    f2_early()

    a(Lmlp + ":")
    a.vm = []
    g.stamp(6)
    if "w4help" not in opts:
        a("s_lshl_b32 %s, %s, 2" % (sT0, sJ))
        a("s_add_u32 %s, %s, %s" % (sT0, sT0, sW))
        a("s_mul_i32 %s, %s, 41" % (sT0, sT0))
        a("v_min_u32 v%d, 40, v%d" % (T[0], L))
        a("v_add_u32 v%d, %s, v%d" % (T[0], sT0, T[0]))
        a("v_min_u32 v%d, 5183, v%d" % (T[0], T[0]))
        a("v_lshlrev_b32 v%d, 7, v%d" % (T[0], T[0]))
        a("s_mul_i32 %s, %s, %d" % (sT0, sK, 576 * 1152))
        a.vmem("buffer_load_dword v%d, v%d, %s, %s offen" % (g.vEP, T[0], srd("w4"), sT0), "touch")
    if "tjoin" in opts:
        a("s_mul_i32 %s, %s, 18432" % (sT0, sQ))
        a("s_add_u32 %s, %s, %s" % (sT0, sT0, sWB))
        a("s_add_u32 %s, %s, %s" % (sT0, sT0, sH2A))
        a("v_min_u32 v%d, 35, v%d" % (T[4], L))
        a("v_lshlrev_b32 v%d, 7, v%d" % (T[4], T[4]))
        a("buffer_load_dword v%d, v%d, %s, %s offen" % (g.vEP, T[4], srd("ws"), sT0))
    colsum(g, [6, 4, 5])
    Lp, Lpc, Lpd = a.label("f2poll"), a.label("f2chk"), a.label("f2done")
    a("s_cmp_lg_u32 %s, 0" % sW)
    a("s_cbranch_scc1 %s" % Lpd)
    a("s_mov_b32 %s, 0" % sCNT)
    a("s_branch %s" % Lpc)
    a(Lp + ":")
    a("buffer_load_dword v%d, v%d, %s, %s offen sc1" % (g.vPL + 1, g.vPL, srd("ws"), sU1))
    a("s_add_u32 %s, %s, 1" % (sCNT, sCNT))
    a(Lpc + ":")
    a("s_waitcnt vmcnt(0)")
    a("v_cmp_ne_u32 vcc, %s, v%d" % (sNM, g.vPL + 1))
    a("s_cbranch_vccz %s" % Lpd)
    if g.opt("sleep", 0):
        a("s_sleep %d" % g.opt("sleep", 0))
    a("s_cmp_lt_u32 %s, 0x20000" % sCNT)
    a("s_cbranch_scc1 %s" % Lp)
    a(Lpd + ":")
    a.wait_vm()
    a("s_barrier")
    g.stamp(7)
    q_linear(g, LA, sX1O, 18, "x1l")
    n0 = len(a.lines)
    g.burst(g.opt("x1pre", 8))
    x1_head = a.lines[n0:]
    for st_ in (7, 8):
        q_tr(g, "w3", st_)
    hold, g.q = g.q, []
    g.fill_lds(14)
    colsum(g, [7, 8])
    g.q = hold
    Lgo, Lredo, Lok = a.label("ga"), a.label("redo"), a.label("gaok")
    a(Lgo + ":")
    R = g.vWF + 24
    XC = T[5]

    def rec_loads(emit):
        emit("buffer_load_dwordx4 %s, v%d, %s, %s offen sc1" % (vr(R, 4), g.vRC, srd("ws"), sHSO))
        emit("buffer_load_dwordx4 %s, v%d, %s, %s offen offset:2048 sc1" % (vr(R + 4, 4), g.vRC, srd("ws"), sHSO))
        emit("buffer_load_dwordx4 %s, v%d, %s, %s offen sc1" % (vr(R + 8, 4), g.vRC + 1, srd("ws"), sHSO))

    def rec_check():
        a("v_xor_b32 v%d, %s, v%d" % (T[10], sNM, R))
        for r in (R + 4, R + 8):
            a("v_bitop3_b32 v%d, v%d, %s, v%d bitop3:0xbe" % (T[10], r, sNM, T[10]))
        a("v_bitop3_b32 v%d, v%d, v%d, v%d bitop3:0x96" % (XC, XC, R + 3, R + 7))

    def rec_stats():
        a("v_add_f32 v%d, v%d, v%d" % (S, R + 1, R + 5))
        a("v_add_f32 v%d, v%d, v%d" % (S + 1, R + 2, R + 6))
        for op in ("v_permlane32_swap_b32", "v_permlane16_swap_b32"):
            a("v_mov_b32 v%d, v%d" % (S + 2, S))
            a("v_mov_b32 v%d, v%d" % (S + 3, S + 1))
            a("%s v%d, v%d" % (op, S, S + 2))
            a("%s v%d, v%d" % (op, S + 1, S + 3))
            a("v_add_f32 v%d, v%d, v%d" % (S, S, S + 2))
            a("v_add_f32 v%d, v%d, v%d" % (S + 1, S + 1, S + 3))
        a("v_add_f32 v%d, v%d, v%d" % (S, S, R + 9))
        a("v_add_f32 v%d, v%d, v%d" % (S + 1, S + 1, R + 10))
        ln_scalars(g, S)
    front = []
    rec_loads(lambda t: front.append(VM(t, "rec")))
    g.q = front + g.q
    for s in range(4):
        q_stage(g, "w4", s, 4 + s)
    NPL = g.opt("npl", 0)
    touch_h = VM("buffer_load_dword v%d, v%d, %s, %s offen" % (g.vEP, T[4], srd("ws"), sST[0]), "touch")
    if NPL:
        for i in range(4 - NPL, 4):
            g.q.insert(len(g.q) - 7 * g.opt("tpos", 0),
                       VM("buffer_load_dwordx4 %s, v%d, %s, %s offen" % (vr(g.vWF + 56 + 4 * (i & 1), 4), g.vXA + i, srd("ws"), sST[1]), "touch"))
    if "tche" not in opts and "hpre" not in opts and "notouch" not in opts and "tjoin" not in opts:
        g.q.append(touch_h)

    def ga_setup():
        a("s_mul_i32 %s, %s, 18432" % (sT0, sQ))
        a("s_add_u32 %s, %s, %s" % (sT0, sT0, sWB))
        a("s_add_u32 %s, %s, %s" % (sST[0], sT0, sH2A))
        a("v_min_u32 v%d, 35, v%d" % (T[4], L))
        a("v_lshlrev_b32 v%d, 7, v%d" % (T[4], T[4]))
        a("s_lshl_b32 %s, %s, 14" % (sST[1], sQ))
        a("s_lshl_b32 %s, %s, 12" % (sST[2], sW))
        a("s_add_u32 %s, %s, %s" % (sST[1], sST[1], sST[2]))
        a("s_add_u32 %s, %s, %s" % (sST[1], sST[1], sH2A))
        a("s_lshr_b32 %s, %s, 1" % (sT0, sQ))
        a("s_lshl_b32 %s, %s, 12" % (sT0, sT0))
        a("s_and_b32 %s, %s, 1" % (sT1, sQ))
        a("s_lshl_b32 %s, %s, 3" % (sT1, sT1))
        a("s_add_u32 %s, %s, %s" % (sT0, sT0, sT1))
        a("s_add_u32 %s, %s, %s" % (sST[3], sT0, sH2A))
        for i in range(4):
            a("v_add_u32 v%d, %s, v%d" % (g.vCA + i, sST[2], g.vXA + i))
        a("s_lshl_b32 %s, %s, 5" % (sT2, sM))
        a("s_add_u32 %s, %s, %s" % (sT2, sT2, sK))
        a("s_lshl_b32 %s, %s, %d" % (sU0, sM, FLS))
        a("s_lshl_b32 %s, %s, 9" % (sT1, sK))
        a("s_add_u32 %s, %s, %s" % (sU0, sU0, sT1))
        a("s_add_u32 %s, %s, %d" % (sU0, sU0, FL + FL_G3))
        a("s_or_b32 %s, %s, 0x30" % (sT0, sXCC))
        a("v_mov_b32 v%d, %s" % (T[0], sT0))
        a("v_mov_b32 v%d, %s" % (T[1], sWG))
        poll_setup(g, 4, sT2)
        a("s_lshl_b32 %s, %s, 2" % (sT0, sW))
        a("s_add_u32 %s, %s, %d" % (sT0, sT0, LBAD))
        a("v_mov_b32 v%d, %s" % (T[6], sT0))
        a("v_mov_b32 v%d, %d" % (T[7], LBAD))
    g.q3 = g.capture(ga_setup)
    RES = g.vWF + 64

    def rec_go():
        force_issue(g, ["rec"])
        a.wait_vm("rec")
        g.q3 += g.capture(rec_check) + g.capture(rec_stats)

    def rec_pub():
        g.fill_alu(100)
        a.lds("ds_write_b128 v%d, %s" % (g.vSA, vr(S, 4)), "stw")

    xprev = []

    def xsum(t, x):
        assert not any(l in g.q3 for l in xprev)
        if t == 0:
            head = ["v_xor_b32 v%d, v%d, v%d" % (XC, x, x + 1)]
        else:
            head = ["v_bitop3_b32 v%d, v%d, v%d, v%d bitop3:0x96" % (XC, XC, x, x + 1)]
        xprev[:] = head + ["v_bitop3_b32 v%d, v%d, v%d, v%d bitop3:0x96" % (XC, XC, x + 2, x + 3)]
        g.q3 = xprev + g.q3
        if t == 17:
            for op in ("v_permlane32_swap_b32", "v_permlane16_swap_b32"):
                g.q3 += ["v_mov_b32 v%d, v%d" % (T[3], XC), "%s v%d, v%d" % (op, XC, T[3]),
                         "v_xor_b32 v%d, v%d, v%d" % (XC, XC, T[3])]
            g.q3 += ["v_bitop3_b32 v%d, v%d, v%d, %s bitop3:0x96" % (XC, XC, R + 11, sNM),
                     "v_or_b32 v%d, v%d, v%d" % (XC, XC, T[10]),
                     "v_cmp_ne_u32 vcc, 0, v%d" % XC,
                     "s_or_b32 %s, vcc_lo, vcc_hi" % sT3,
                     "v_mov_b32 v%d, %s" % (XC, sT3)]

    def res_rd():
        g.q2.append(LD("ds_read_b64 %s, v%d" % (vr(RES, 2), g.vRA), "res"))
        g.q2.append(LD("ds_read_b32 v%d, v%d" % (RES + 2, g.vRA + 1), "res"))

    def tr01():
        for i in range(1, 4):
            g.q2.append(LD("ds_read_b128 %s, v%d" % (vr(g.vAB + 4 * i, 4), g.vSA + i), "ab"))
        q_tr(g, "w4", 0)
        q_tr(g, "w4", 1)

    def redo():
        a(Lredo + ":")
        a("s_add_u32 %s, %s, 1" % (sBAT, sBAT))
        a("s_cmp_ge_u32 %s, 0x4000" % sBAT)
        a("s_cbranch_scc1 %s" % Lok)
        a("s_waitcnt vmcnt(0) lgkmcnt(0)")
        a("s_barrier")
        for l in x1_head:
            a(l)
        a("s_branch %s" % Lgo)
    g.slow.append(redo)
    sync(g, [("x1l", g.opt("c0", 3))], "all")
    g.stamp(8)
    G01 = g.opt("g01", 15)
    gemm_seq(g, acc, full(0, 18), {(g.opt("c0", 3) - 1, 0): ([("x1l", 7)], None, None),
                                   (g.opt("rgo", 4), 0): (None, None, rec_go),
                                   (6, 0): ([("x1l", 11)], None, None), (10, 0): ([("x1l", 17)], None, res_rd),
                                   (G01 - 1, 0): (None, None, rec_pub),
                                   (G01, 0): ([("w4", 1)], ["stw", "res"], tr01)}, False, "a", None, xsum)
    g.flush()
    if "forceredo" in opts:
        a("s_cmp_lt_u32 %s, %s" % (sBAT, sW))
        a("s_cselect_b32 %s, 1, 0" % sT3)
        a("v_or_b32 v%d, %s, v%d" % (XC, sT3, XC))
    a.lds("ds_write_b32 v%d, v%d" % (T[6], XC), "bad")
    g.stamp(9)
    H2F = " nt" if "h2nt" in opts else (" sc1" if "h2sc1" in opts else "")
    OUTF = " nt" if "outnt" in opts else (" sc1" if "outsc1" in opts else "")
    NE = g.opt("ne", 1)
    P = g.vWF
    for i in range(4):
        g.fine("e%d" % i)
        items = [(acc + 16 * c + 4 * i + h, cs + 4 * c + h, g.vAB + 4 * i) for c in range(2) for h in (0, 2)]
        if i == 0:
            items += [(acc + 32 + h, cs + 8 + h, g.vAB) for h in (0, 2)]
        ln_gelu(g, items, g.vXF)
        for n, (y, _, _) in enumerate(items):
            a("v_cvt_pk_bf16_f32 v%d, v%d, v%d" % (P + 4 * i + n if n < 4 else P + 12 + n, y, y + 1))
        g.fine("es%d" % i)
        if i == 1:
            a.wait_lg("badr")
            a("v_or3_b32 v%d, v%d, v%d, v%d" % (R, R, R + 1, R + 2))
            a("v_or_b32 v%d, v%d, v%d" % (R, R, R + 3))
            a("v_cmp_ne_u32 vcc, 0, v%d" % R)
        a.vmem("buffer_store_dwordx4 %s, v%d, %s, %s offen%s" % (vr(P + 4 * i, 4), g.vXA + i, srd("ws"), sST[1], H2F if i < 4 - NPL else ""), "h2a")
        if i == 0:
            a.vmem("buffer_store_dwordx2 %s, v%d, %s, %s offen%s" % (vr(P + 16, 2), g.vXA + 4, srd("ws"), sST[3], H2F), "h2a")
            sync(g, [], "all")
            a.lds("ds_read_b128 %s, v%d" % (vr(R, 4), T[7]), "badr")
            if "tche" in opts:
                g.q.append(touch_h)
            for s in range(4, 4 + NE):
                q_stage(g, "w4", s, s)
        a.lds("ds_write_b128 v%d, %s" % (g.vCA + i, vr(P + 4 * i, 4)), "own")
        if i < 3:
            g.burst(2 * NE if i < 2 else 10)
        if i == 1:
            a("s_cbranch_vccnz %s" % Lredo)
            a(Lok + ":")
    g.fine("e4")
    g.stamp(10)

    NW = g.opt("nw", 2)
    wslots = [5, 3, 2] if NE == 1 else ([3, 2] if NE == 2 else [4, 5, 3])
    wst = list(range(4 + NE, 4 + NE + NW))
    for s, slot in zip(wst, wslots):
        q_stage(g, "w4", s, slot)
    g.burst(g.opt("s67", 2))
    sync(g, [("w4", 3)], "all")
    q_tr(g, "w4", 2)
    q_tr(g, "w4", 3)

    def flag3():
        a("s_mov_b64 exec, %s" % sW0M)
        a("buffer_store_byte v%d, v%d, %s, 0 offen" % (T[0], T[1], srd("dbg")))
        a("s_mov_b64 exec, -1")
        for s in range(4, 4 + NE):
            q_tr(g, "w4", s)

    def poll3():
        g.burst()
        poll_early(g)
    g.gap, g.extra = g.opt("b0gap", 32), 0
    gemm_seq(g, acc, full(0, 4), {(g.opt("f3t", 0), g.opt("f3i", 2)): (["h2a"], None, flag3),
                                  (g.opt("p3t", 2), g.opt("p3i", 2)): (None, None, poll3)}, False, "b0",
             lambda: g.burst(g.opt("s67b", 3)))
    g.gap, g.extra = gap, extra
    g.flush()
    a("s_add_u32 %s, %s, 1" % (sM0, sQ))
    a("s_and_b32 %s, %s, 3" % (sM0, sM0))
    a("s_lshl_b32 %s, %s, 14" % (sM0, sM0))
    a("s_add_u32 %s, %s, %s" % (sOFF, sM0, sH2A))
    a("s_add_u32 m0, %s, %d" % (sW10, LA + 4096 * 4))
    if wst:
        a.wait_vm([("w4", wst[-1])])
    a.wait_lg()
    g.stamp(11)
    wait_local(g, 0x20, sU0, sQ, sNM, True)
    g.stamp(12)

    def q_h2l(t0, t1):
        for t in range(t0, t1):
            if t == 4:
                pass
            elif t == t0:
                g.q.append(I("s_add_u32 m0, %s, %d" % (sW10, LA + 4096 * t)))
            else:
                g.q.append(I("s_add_u32 m0, m0, 4096"))
            if t == 4:
                pass
            elif (t % 4 == 0 or t == t0) and t < 16:
                g.q.append(I("s_add_u32 %s, %s, %d" % (sM0, sQ, t >> 2)))
                g.q.append(I("s_and_b32 %s, %s, 3" % (sM0, sM0)))
                g.q.append(I("s_lshl_b32 %s, %s, 14" % (sM0, sM0)))
                if t % 4:
                    g.q.append(I("s_add_u32 %s, %s, %d" % (sM0, sM0, 4096 * (t % 4))))
                g.q.append(I("s_add_u32 %s, %s, %s" % (sOFF, sM0, sH2A)))
            elif t == 16:
                g.q.append(I("s_add_u32 %s, %s, 65536" % (sOFF, sH2A)))
            else:
                g.q.append(I("s_add_u32 %s, %s, 4096" % (sOFF, sOFF)))
            g.q.append(VM("buffer_load_dwordx4 v%d, %s, %s offen sc1 lds" % (g.vXA, srd("ws"), sOFF), ("h2l", t)))
    used = [sl for sl in wslots[:NW] if sl < 4]
    assert 2 not in used
    TS = 13 if used else 18
    q_h2l(4, TS)
    g.burst(g.opt("h2pre", 8))
    for s in reversed(wst):
        q_tr(g, "w4", s)
    g.fill_lds(g.opt("trpre", 12))
    CA = g.vCA

    def fin_setup():
        a("v_and_b32 v%d, 7, v%d" % (T[3], L))
        a("v_lshrrev_b32 v%d, 4, v%d" % (T[2], L))
        a("v_lshl_add_u32 v%d, v%d, 3, v%d" % (T[0], T[2], T[3]))
        a("v_bfe_u32 v%d, v%d, 3, 1" % (T[1], L))
        a("s_movk_i32 %s, %d" % (sT1, PB))
        a("v_mov_b32 v%d, 0x7fffffff" % T[8])
        for i in range(4):
            a("s_add_u32 %s, %s, %d" % (sT0, sW, i))
            a("s_and_b32 %s, %s, 3" % (sT0, sT0))
            a("s_lshl_b32 %s, %s, 1" % (sT0, sT0))
            a("v_add_u32 v%d, %s, v%d" % (T[4], sT0, T[1]))
            a("v_sub_u32 v%d, %s, v%d" % (T[7], sK, T[4]))
            a("v_and_b32 v%d, 7, v%d" % (T[7], T[7]))
            a("v_cmp_ne_u32 vcc, 0, v%d" % T[7])
            a("v_lshl_add_u32 v%d, v%d, 3, v%d" % (T[4], T[4], T[7]))
            a("v_mul_u32_u24 v%d, %s, v%d" % (T[4], sT1, T[4]))
            a("v_cndmask_b32 v%d, v%d, v%d, vcc" % (T[4], T[8], T[4]))
            a("v_lshl_add_u32 v%d, v%d, 4, v%d" % (CA + i, T[0], T[4]))
            if i == 0:
                a("v_lshl_add_u32 v%d, v%d, 3, v%d" % (T[5], T[0], T[4]))
        a("v_add_u32 v%d, %s, v%d" % (T[3], sW, T[3]))
        a("v_and_b32 v%d, 3, v%d" % (T[3], T[3]))
        a("v_lshl_add_u32 v%d, v%d, 1, v%d" % (T[3], T[3], T[1]))
        a("v_sub_u32 v%d, %s, v%d" % (T[7], sK, T[3]))
        a("v_and_b32 v%d, 7, v%d" % (T[7], T[7]))
        a("v_lshl_add_u32 v%d, v%d, 3, v%d" % (T[3], T[3], T[7]))
        a("v_mul_u32_u24 v%d, %s, v%d" % (T[3], sT1, T[3]))
        a("v_lshl_add_u32 v%d, v%d, 2, v%d" % (T[6], T[2], T[3]))
        a("v_lshlrev_b32 v%d, v%d, %s" % (T[7], T[7], sNM))
        a("s_mul_i32 %s, %s, %d" % (sPART, sJ, 64 * PB))
        a("s_add_u32 %s, %s, %d" % (sPART, sPART, PART))
        a("s_lshl_b32 %s, %s, 9" % (sT0, sW))
        a("s_add_u32 %s, %s, %s" % (sST[0], sPART, sT0))
        a("s_lshl_b32 %s, %s, 4" % (sT1, sW))
        a("s_add_u32 %s, %s, 2304" % (sT1, sT1))
        a("s_add_u32 %s, %s, %s" % (sU1, sPART, sT1))
        a("s_mul_i32 %s, %s, %d" % (sINB, sK, 8 * PB))
        a("s_add_u32 %s, %s, %s" % (sINB, sINB, sPART))
        a("s_add_u32 %s, %s, %d" % (sST[4], sINB, 2 * PB))
        a("v_lshrrev_b32 v%d, 5, v%d" % (T[2], L))
        a("v_mul_u32_u24 v%d, %d, v%d" % (T[4], 4 * PB, T[2]))
        a("v_and_b32 v%d, 31, v%d" % (T[3], L))
        a("v_lshl_add_u32 v%d, v%d, 4, v%d" % (T[8], T[3], T[4]))
        a("v_add_u32 v%d, %s, v%d" % (T[8], sT0, T[8]))
        a("v_lshl_add_u32 v%d, v%d, 3, v%d" % (T[10], T[3], T[4]))
        a("v_add_u32 v%d, 2048, v%d" % (T[10], T[10]))
        a("v_lshrrev_b32 v%d, 3, v%d" % (T[3], T[3]))
        a("v_lshl_add_u32 v%d, v%d, 2, v%d" % (T[9], T[3], T[4]))
        a("v_add_u32 v%d, %s, v%d" % (T[9], sT1, T[9]))
        a("v_and_b32 v%d, 7, v%d" % (T[4], L))
        a("v_lshl_add_u32 v%d, v%d, 4, v%d" % (T[4], T[3], T[4]))
        a("s_and_b32 %s, %s, 1" % (sT0, sK))
        a("s_lshl_b32 %s, %s, 5" % (sT0, sT0))
        a("v_lshl_add_u32 v%d, v%d, 2, %s" % (T[4], T[4], sT0))
        a("s_lshl_b32 %s, %s, 1" % (sT0, sNM))
        a("s_xor_b32 %s, %s, %s" % (sT0, sT0, sNM))
        a("s_lshl_b32 %s, %s, 2" % (sT1, sT0))
        a("s_xor_b32 %s, %s, %s" % (sT0, sT0, sT1))
        a("v_lshlrev_b32 v%d, 2, v%d" % (T[2], T[2]))
        a("v_lshlrev_b32 v%d, v%d, %s" % (T[11], T[2], sT0))
        a("s_mov_b32 s62, 0x01010101")
        a("s_mov_b32 s63, 0x01010101")
        a("s_lshr_b32 %s, %s, 1" % (sT2, sK))
        a("s_sub_u32 %s, %s, %s" % (sT2, sT2, sW))
        a("s_and_b32 %s, %s, 3" % (sT2, sT2))
        a("s_lshl_b32 %s, %s, 3" % (sT3, sM))
        a("s_add_u32 %s, %s, %s" % (sT3, sT3, sK))
        a("s_mul_i32 %s, %s, %d" % (sT3, sT3, 8 * 1152))
        for i in range(3):
            a("v_lshlrev_b32 v%d, 16, v%d" % (g.vAB + 4 + 2 * i, RES + i))
            a("v_and_b32 v%d, 0xffff0000, v%d" % (g.vAB + 5 + 2 * i, RES + i))
    g.q3 = g.capture(fin_setup)
    g.fill_alu(g.opt("fsn", 0))
    late = list(range(4 + NE + NW, 9))

    def rest():
        if TS < 18:
            q_h2l(TS, 18)
        for s, slot in zip(late, [6, 7, 4]):
            q_stage(g, "w4", s, slot)
    sync(g, [("h2l", 6)], [("trb", 2 * wst[-1] + 1)] if used else None)
    g.stamp(13)
    rest()

    DPP8 = ("quad_perm:[1,0,3,2]", "quad_perm:[2,3,0,1]", "row_half_mirror")
    CW = P + 22

    def send(i):
        b = P + 4 * i
        for c in range(2):
            for h in range(2):
                y = acc + 16 * c + 4 * i + 2 * h
                a("v_cvt_pk_bf16_f32 v%d, v%d, v%d" % (b + 2 * c + h, y, y + 1))
        a("buffer_store_dwordx4 %s, v%d, %s, %s offen sc1" % (vr(b, 4), CA + i, srd("ws"), sST[0]))
        k = CW if i == 0 else P + 18
        if i == 0:
            for h in range(2):
                a("v_cvt_pk_bf16_f32 v%d, v%d, v%d" % (P + 16 + h, acc + 32 + 2 * h, acc + 33 + 2 * h))
            a("buffer_store_dwordx2 %s, v%d, %s, %s offen offset:2048 sc1" % (vr(P + 16, 2), T[5], srd("ws"), sPART))
            a("v_bitop3_b32 v%d, v%d, v%d, v%d bitop3:0x96" % (k, P + 16, P + 17, b + 3))
            a("v_xor_b32 v%d, v%d, v%d" % (k, k, b + 2))
        else:
            a("v_xor_b32 v%d, v%d, v%d" % (k, b + 2, b + 3))
            a("s_lshl_b64 vcc, s[62:63], %d" % i)
        a("v_bitop3_b32 v%d, v%d, v%d, v%d bitop3:0x96" % (k, k, b, b + 1))
        for mod in DPP8:
            a("v_xor_b32_dpp v%d, v%d, v%d %s row_mask:0xf bank_mask:0xf" % (k, k, k, mod))
        if i:
            a("v_cndmask_b32 v%d, v%d, v%d, vcc" % (CW, CW, k))
    K0_ = g.opt("k0", 14)
    frags = full(4, K0_) + [(t, i) for i in range(4) for t in range(K0_, 18)]
    gates = {(5, 0): ([("h2l", 8)], None, None), (7, 0): ([("h2l", 11)], None, None),
             (min(K0_ - 2, 10), 0): ([("h2l", 17)], None, None),
             }
    for n, s_ in enumerate(reversed(late)):
        key = (min(K0_ + 1 - 2 * n, 2 * s_ - 1), 0) if n == 0 or K0_ + 1 - 2 * n >= K0_ else (min(K0_ + 1 - 2 * n, 2 * s_ - 2), 2)
        assert key not in gates
        gates[key] = ([("w4", s_)], None, lambda s_=s_: q_tr(g, "w4", s_))
    if g.opt("wb", 0):
        def wb():
            Lw = a.label("wb")
            a("s_or_b32 %s, %s, %s" % (sM0, sQ, sW) if "wball" not in opts else "s_mov_b32 %s, %s" % (sM0, sW))
            a("s_cmp_lg_u32 %s, 0" % sM0)
            a("s_cbranch_scc1 %s" % Lw)
            a("buffer_wbl2 sc1")
            a(Lw + ":")
        gates[(g.opt("wb", 0), g.opt("wbi", 1))] = (None, None, wb)
    for i in range(3):
        gates[(K0_ + 2, i + 1)] = (None, None, (lambda i=i: g.q3.extend(g.capture(lambda: send(i)))))
    gemm_seq(g, acc, frags, gates, True, "b", lambda: g.burst(3))
    g.flush()
    g.stamp(14)
    X = g.vWF + 24
    C = X + 16

    send(3)
    a("v_xor_b32 v%d, v%d, v%d" % (CW, T[7], CW))
    a("s_mov_b32 exec_lo, 0x0f0f0f0f")
    a("s_mov_b32 exec_hi, 0x0f0f0f0f")
    a("buffer_store_dword v%d, v%d, %s, %s offen sc1" % (CW, T[6], srd("ws"), sU1))
    a("s_mov_b64 exec, -1")
    a("s_mov_b32 %s, 0" % sCNT)
    g.stamp(15)

    F, N = acc, acc + 16

    def gather(ninth):
        Lq, Lqd = a.label("inb"), a.label("inbdone")
        a("s_waitcnt vmcnt(0) lgkmcnt(0)")
        a(Lq + ":")
        for s in range(4):
            so, off = (sINB if s < 2 else sST[4]), PB * (s & 1)
            if s == 0:
                a("s_mov_b32 exec_lo, 0")
            a("buffer_load_dwordx4 %s, v%d, %s, %s offen offset:%d sc1" % (vr(X + 4 * s, 4), T[8], srd("ws"), so, off))
            if ninth:
                a("buffer_load_dwordx2 %s, v%d, %s, %s offen offset:%d sc1" % (vr(C + 4 * s, 2), T[10], srd("ws"), so, off))
            if s == 0:
                a("s_mov_b32 exec_lo, -1")
                for s2 in range(4):
                    so2, off2 = (sINB if s2 < 2 else sST[4]), PB * (s2 & 1)
                    a("buffer_load_dword v%d, v%d, %s, %s offen offset:%d sc1" % (C + 4 * s2 + 2, T[9], srd("ws"), so2, off2))
        a("s_add_u32 %s, %s, 1" % (sCNT, sCNT))
        per = 2 if ninth else 1
        for s in range(4):
            a("s_waitcnt vmcnt(%d)" % (per * (3 - s)))
            x = X + 4 * s
            if s == 0:
                a("v_xor_b32 v%d, v%d, v%d" % (T[0], x, x + 1))
                a("v_bitop3_b32 v%d, v%d, v%d, v%d bitop3:0x96" % (T[1], T[11], C + 2, C + 6))
                a("v_bitop3_b32 v%d, v%d, v%d, v%d bitop3:0x96" % (T[1], T[1], C + 10, C + 14))
            else:
                a("v_bitop3_b32 v%d, v%d, v%d, v%d bitop3:0x96" % (T[0], T[0], x, x + 1))
            a("v_bitop3_b32 v%d, v%d, v%d, v%d bitop3:0x96" % (T[0], T[0], x + 2, x + 3))
            if ninth:
                a("v_bitop3_b32 v%d, v%d, v%d, v%d bitop3:0x96" % (T[0], T[0], C + 4 * s, C + 4 * s + 1))
            dpp = list(DPP8) if s == 3 else []
            for base, src, nw in [(F, x, 4)] + ([(N, C + 4 * s, 2)] if ninth else []):
                for i in range(nw):
                    lo = base + 2 * i + (2 * nw if s else 0)
                    a("v_lshlrev_b32 v%d, 16, v%d" % (lo, src + i))
                    a("v_and_b32 v%d, 0xffff0000, v%d" % (lo + 1, src + i))
                    if dpp:
                        a("v_xor_b32_dpp v%d, v%d, v%d %s row_mask:0xf bank_mask:0xf" % (T[0], T[0], T[0], dpp.pop(0)))
                if s == 3 and base == F:
                    a("v_cmp_ne_u32 vcc, v%d, v%d" % (T[1], T[0]))
                if s:
                    for i in range(nw):
                        a("v_pk_add_f32 %s, %s, %s" % (vr(base + 2 * i, 2), vr(base + 2 * i, 2), vr(base + 2 * nw + 2 * i, 2)))
        a("s_cbranch_vccz %s" % Lqd)
        if g.opt("fsleep", 0):
            a("s_sleep %d" % g.opt("fsleep", 0))
        a("s_cmp_lt_u32 %s, 0x20000" % sCNT)
        a("s_cbranch_scc1 %s" % Lq)
        a(Lqd + ":")

    def finish(nw, F, res, dst):
        for i in range(nw):
            a("v_permlane32_swap_b32 v%d, v%d" % (F + i, F + nw + i))
        for i in range(nw // 2):
            a("v_pk_add_f32 %s, %s, %s" % (vr(F + 2 * i, 2), vr(F + 2 * i, 2), vr(F + nw + 2 * i, 2)))
        for i in range(nw // 2):
            a("v_cvt_pk_bf16_f32 v%d, v%d, v%d" % (dst + i, F + 2 * i, F + 2 * i + 1))
        for i in range(nw // 2):
            a("v_lshlrev_b32 v%d, 16, v%d" % (F + 2 * i, dst + i))
            a("v_and_b32 v%d, 0xffff0000, v%d" % (F + 2 * i + 1, dst + i))
        for i in range(nw // 2):
            a("v_pk_add_f32 %s, %s, %s" % (vr(F + 2 * i, 2), vr(F + 2 * i, 2), vr(res + 2 * i, 2)))
        for i in range(nw // 2):
            a("v_cvt_pk_bf16_f32 v%d, v%d, v%d" % (dst + i, F + 2 * i, F + 2 * i + 1))

    def own(i):
        for r in range(4):
            a("ds_bpermute_b32 v%d, v%d, v%d" % (X + r, T[4], P + 4 * i + r))

    Lx, Ly, Lg = a.label("fin"), a.label("fin"), a.label("fin")
    a("s_cmp_lg_u32 %s, 0" % sT2)
    a("s_cbranch_scc1 %s" % Lx)
    own(0)
    for r in range(2):
        a("ds_bpermute_b32 v%d, v%d, v%d" % (C + r, T[4], P + 16 + r))
    gather(True)
    finish(2, N, g.vAB + 8, g.vAB + 2)
    a("buffer_store_dword v%d, v%d, %s, %s offen%s" % (g.vAB + 2, g.vOA + 1, srd("out"), sT3, OUTF))
    a("s_branch %s" % Ly)
    a(Lx + ":")
    for i in (1, 2):
        Ln = a.label("fin")
        a("s_cmp_lg_u32 %s, %d" % (sT2, i))
        a("s_cbranch_scc1 %s" % Ln)
        own(i)
        a("s_branch %s" % Lg)
        a(Ln + ":")
    own(3)
    a(Lg + ":")
    gather(False)
    a(Ly + ":")
    g.stamp(16)
    finish(4, F, g.vAB + 4, g.vAB)
    a("buffer_store_dwordx2 %s, v%d, %s, %s offen%s" % (vr(g.vAB, 2), g.vOA, srd("out"), sT3, OUTF))
    Lz = a.label("fin")
    a("s_or_b32 %s, %s, %s" % (sT0, sK, sQ))
    a("s_or_b32 %s, %s, %s" % (sT0, sT0, sW))
    a("s_cmp_lg_u32 %s, 0" % sT0)
    a("s_cbranch_scc1 %s" % Lz)
    a("s_lshl_b32 %s, %s, %d" % (sT0, sM, FLS))
    a("v_mov_b32 v%d, %s" % (T[0], sT0))
    a("v_mov_b32 v%d, %s" % (T[1], sNM))
    a("s_mov_b64 exec, 1")
    a("buffer_store_dword v%d, v%d, %s, 0 offen sc1" % (T[1], T[0], srd("ws")))
    a(Lz + ":")
    if g.stamps:
        a("s_mov_b64 exec, -1")
        g.stamp(17)
        a("s_waitcnt vmcnt(0)")
        g.stamp(18)
        for i in range(len(g.fines)):
            a("v_writelane_b32 v%d, s%d, %d" % (g.vSTAMP, 90 + 2 * i, 32 + i))
        a("v_writelane_b32 v%d, s64, 63" % g.vSTAMP)
        a("s_cmp_lg_u32 %s, 0" % sW)
        a("s_cbranch_scc1 %s" % Lend)
        a("s_lshl_b32 %s, s2, 8" % sT0)
        a("s_add_u32 %s, %s, %d" % (sT0, sT0, STAMP))
        a("v_lshlrev_b32 v%d, 2, v%d" % (T[0], L))
        a("buffer_store_dword v%d, v%d, %s, %s offen" % (g.vSTAMP, T[0], srd("ws"), sT0))
        if probe:
            a("s_cmp_lg_u32 s2, %d" % probe[0])
            a("s_cbranch_scc1 %s" % Lend)
            a("v_readlane_b32 %s, v%d, %d" % (sT1, g.vSTAMP, probe[1]))
            a("s_sub_u32 %s, %s, s64" % (sT1, sT1))
            a("s_mul_i32 %s, %s, %d" % (sT1, sT1, probe[2]))
            a("s_add_u32 %s, %s, 10000" % (sT1, sT1))
            a("s_min_u32 %s, %s, 200000" % (sT1, sT1))
            a("L_probe:")
            a("s_memrealtime s[60:61]")
            a("s_waitcnt lgkmcnt(0)")
            a("s_sub_u32 %s, s60, s64" % sT2)
            a("s_cmp_lt_u32 %s, %s" % (sT2, sT1))
            a("s_cbranch_scc1 L_probe")
    a(Lend + ":")
    a("s_endpgm")
    for f in g.slow:
        a("s_nop 7")
        a("s_nop 7")
        f()

    body = a.text()
    src = HEADER + "; @launch grid=(256,1,1) block=(256,1,1) lds=%d\n" % LDS_BYTES
    src += '.amdgcn_target "amdgcn-amd-amdhsa--gfx950"\n.text\n.globl %s_kernel\n.p2align 8\n.type %s_kernel,@function\n%s_kernel:\n' % (NAME, NAME, NAME)
    src += body
    src += '''.section .rodata,"a"
.p2align 6
.amdhsa_kernel %s_kernel
  .amdhsa_next_free_vgpr 512
  .amdhsa_next_free_sgpr 102
  .amdhsa_accum_offset 256
  .amdhsa_group_segment_fixed_size 0
  .amdhsa_kernarg_size 64
  .amdhsa_user_sgpr_count 2
  .amdhsa_user_sgpr_kernarg_segment_ptr 1
  .amdhsa_system_sgpr_workgroup_id_x 1
.end_amdhsa_kernel
''' % NAME
    return src


if __name__ == "__main__":
    out = sys.argv[1]
    probe = None
    for o in sys.argv[2:]:
        if o.startswith("probe="):
            probe = tuple(int(x) for x in o[6:].split(","))
    open(out, "w").write(build(set(sys.argv[2:]), probe))
```
